```python
import torch

def _softmax(x, axis=-1):
    return torch.softmax(x, dim=axis)

def _gelu(x):
    return torch.nn.functional.gelu(x, approximate='tanh')

def _silu(x):
    return torch.nn.functional.silu(x)

def _sigmoid(x):
    return torch.sigmoid(x)

def _layernorm(x, axis=-1, eps=1e-05):
    m = x.mean(dim=axis, keepdim=True)
    v = x.var(dim=axis, keepdim=True, unbiased=False)
    return (x - m) / torch.sqrt(v + eps)

def _scatter_add(tgt, idx, src, axis=0):
    return tgt.clone().index_add_(axis, idx, src)

def _segment_sum(src, seg, n):
    out = torch.zeros((n,) + src.shape[1:], dtype=src.dtype)
    return out.index_add_(0, seg, src)

def _pad(x, pw):
    flat = tuple((v for pair in reversed(pw) for v in pair))
    return torch.nn.functional.pad(x, flat)
kernel_name = 'adaLN_cond__mha_block_cached__moe_arch_mod__prompt'

def setup_inputs():

    _w = lambda a: (lambda t: t.to(torch.bfloat16) if t.is_floating_point() else t)(torch.as_tensor(a))

    def _A_setup():
        B, Sq, D = (1, 2048, 512)
        H, Sk, Dh = (32, 2048, 128)
        return {'x': _w((lambda *s: torch.randn(*s, dtype=torch.bfloat16) * 0.1)(B, Sq, D)), 'k_cache': _w((lambda *s: torch.randn(*s, dtype=torch.bfloat16) * 0.8)(B, H, Sk, Dh)), 'v_cache': _w((lambda *s: torch.randn(*s, dtype=torch.bfloat16) * 1.6)(B, H, Sk, Dh)), 'wq': _w((lambda *s: torch.randn(*s, dtype=torch.bfloat16) * 0.8)(D, H * Dh) * D ** (-0.5)), 'wo': _w((lambda *s: torch.randn(*s, dtype=torch.bfloat16) * 1.6)(H * Dh, D) * (H * Dh) ** (-0.5))}
    _A_in = _A_setup()

    def _B_setup():
        B, S, D, F, C = (1, 2048, 512, 1792, 8)
        return {'x': _w((lambda *s: torch.randn(*s, dtype=torch.bfloat16) * 0.1)(B, S, D)), 'w_r': _w((lambda *s: torch.randn(*s, dtype=torch.bfloat16) * 3.2)(D)), 'w_gate': _w((lambda *s: torch.randn(*s, dtype=torch.bfloat16) * 3.2)(D, F)), 'w_up': _w((lambda *s: torch.randn(*s, dtype=torch.bfloat16) * 3.2)(D, F)), 'w_down': _w((lambda *s: torch.randn(*s, dtype=torch.bfloat16) * 3.2)(F, D))}
    _B_in = _B_setup()
    return {'A_x': _A_in['x'], 'A_k_cache': _A_in['k_cache'], 'A_v_cache': _A_in['v_cache'], 'A_wq': _A_in['wq'], 'A_wo': _A_in['wo'], 'B_x': _B_in['x'], 'B_w_r': _B_in['w_r'], 'B_w_gate': _B_in['w_gate'], 'B_w_up': _B_in['w_up'], 'B_w_down': _B_in['w_down'], 'c': _w((lambda *s: torch.randn(*s, dtype=torch.bfloat16) * 0.2)(1, 512) * 8.0), 'w_mod': _w((lambda *s: torch.randn(*s, dtype=torch.bfloat16) * 0.2)(512, 6 * 512) * 512 ** (-0.5) * 8.0)}

def reference(A_x, A_k_cache, A_v_cache, A_wq, A_wo, B_x, B_w_r, B_w_gate, B_w_up, B_w_down, c, w_mod):

    def _A_ref(x, k_cache, v_cache, wq, wo):
        B, Sq, D = x.shape
        H, Dh = (32, 128)
        q = (lambda x, *d: x.permute(*d))((x @ wq).reshape(B, Sq, H, Dh), 0, 2, 1, 3)
        scores = torch.einsum('bhqd,bhkd->bhqk', q, k_cache) * Dh ** (-0.5)
        p = _softmax(scores, axis=-1)
        o = torch.einsum('bhqk,bhkd->bhqd', p, v_cache)
        return (lambda x, *d: x.permute(*d))(o, 0, 2, 1, 3).reshape(B, Sq, H * Dh) @ wo

    def _B_ref(x, w_r, w_gate, w_up, w_down):
        B, S, D = x.shape
        C = 8
        r = x @ w_r
        idx = torch.argsort(-r, axis=-1)[:, :C]
        idx_e = (lambda x, n, axis: torch.repeat_interleave(x, n, dim=axis))(idx.reshape(B, C, 1), D, axis=2)
        x_sel = (lambda x, i, axis: torch.take_along_dim(x, i, dim=axis))(x, idx_e, axis=1)
        g = _silu(x_sel @ w_gate)
        u = x_sel @ w_up
        y = g * u @ w_down
        r_sel = _sigmoid((lambda x, i, axis: torch.take_along_dim(x, i, dim=axis))(r, idx, axis=1))
        y = y * r_sel.reshape(B, C, 1)
        b_off = (torch.arange(B) * S).reshape(B, 1)
        flat_idx = (idx + b_off).reshape(B * C)
        zero = (x * 0.0).reshape(B * S, D)
        upd = _scatter_add(zero, flat_idx, y.reshape(B * C, D), axis=0)
        return x + upd.reshape(B, S, D)
    x = A_x
    mod = (_silu(c) @ w_mod).reshape(c.shape[0], 6, 1, -1)
    sa, ca, ga, sb, cb, gb = (mod[:, 0].clone(), mod[:, 1].clone(), mod[:, 2].clone(), mod[:, 3].clone(), mod[:, 4].clone(), mod[:, 5].clone())
    h = _layernorm(x, axis=-1) * (1 + ca) + sa
    x = x + ga * _A_ref(h, A_k_cache, A_v_cache, A_wq, A_wo)
    h = _layernorm(x, axis=-1) * (1 + cb) + sb
    x = x + gb * _B_ref(h, B_w_r, B_w_gate, B_w_up, B_w_down)
    return x
```

```python
from genlib import *
from gen_small import *
import struct

def f32hex(x):
    return struct.unpack("<I", struct.pack("<f", x))[0]

SCALE_C = (128 ** -0.5) * 1.4426950408889634
THR = 62.0

V_KA = 1
V_VA = 9
V_KDMA = 13
V_VDMA = 14
V_NMC = 15
V_MTHR = 16
V_L = 17
V_M = 18
V_MX = 19
V_T = 20
V_RING = 24
NRING = 8
V_P = 56
V_S = [72, 104]
V_PA = 136
V_WDMA = 140
V_HOFF = 141
V_LANE16 = 142
V_HX = 144
A_Q = 0
A_O = 32
NVGPR = 160
NAGPR = 96

KSLOT = [i * 16384 for i in range(4)]
VSLOT = [65536 + i * 16384 for i in range(4)]

S_HEAD = 3; S_QB = 4; S_W = 5; S_W1K = 6
S_SRDK = 8; S_SRDV = 12; S_SRDW = 16; S_SRDH = 20; S_SRDO = 24
S_KOFF = 28; S_VOFF = 29; S_T0 = 30; S_T1 = 31; S_CNT = 32; S_C = 33; S_T2 = 34; S_SCALE = 35; S_L2E = 44

def ring(g):
    b = V_RING + 4 * (g % NRING)
    return b

def dma(a, srdreg, voff, soff_sgpr, extra, ldsaddr):
    a(f"s_add_u32 m0, s{S_W1K}, {ldsaddr}")
    if extra:
        a(f"s_add_u32 s{S_T0}, s{soff_sgpr}, {extra}")
        so = S_T0
    else:
        a("s_nop 0")
        so = soff_sgpr
    a(f"buffer_load_dwordx4 v{voff}, s[{srdreg}:{srdreg+3}], s{so} offen lds")

def dma_k(a, slot):
    dma(a, S_SRDK, V_KDMA, S_KOFF, 0, KSLOT[slot])
    dma(a, S_SRDK, V_KDMA, S_KOFF, 8192, KSLOT[slot] + 8192)
    a(f"s_add_u32 s{S_KOFF}, s{S_KOFF}, 16384")

def dma_v(a, slot):
    dma(a, S_SRDV, V_VDMA, S_VOFF, 0, VSLOT[slot])
    dma(a, S_SRDV, V_VDMA, S_VOFF, 8192, VSLOT[slot] + 8192)
    a(f"s_add_u32 s{S_VOFF}, s{S_VOFF}, 16384")

class Stream:
    pass

def kread(g, slot, kb, ks):
    b = ring(g)
    return [f"ds_read_b128 v[{b}:{b+3}], v{V_KA+ks} offset:{KSLOT[slot] + kb*8192}"]

def vread(g, slot, s, t):
    b = ring(g)
    off = VSLOT[slot] - 65536 + s * 4096
    return [f"ds_read_b64_tr_b16 v[{b}:{b+1}], v{V_VA+t} offset:{off}",
            f"ds_read_b64_tr_b16 v[{b+2}:{b+3}], v{V_VA+t} offset:{off+2048}"]

def wread(g, ldsbase, s, t):
    b = ring(g)
    off = ldsbase + s * 4096
    ar = V_PA + t
    if off >= 65536:
        off -= 65536; ar = 15 + t
    return [f"ds_read_b64_tr_b16 v[{b}:{b+1}], v{ar} offset:{off}",
            f"ds_read_b64_tr_b16 v[{b+2}:{b+3}], v{ar} offset:{off+1024}"]

def hfrag(ks):
    if ks < 16: return f"a[{A_O+4*ks}:{A_O+4*ks+3}]"
    if ks < 24: return f"a[{A_Q+4*(ks-16)}:{A_Q+4*(ks-16)+3}]"
    if ks < 28: return f"v[{V_P+4*(ks-24)}:{V_P+4*(ks-24)+3}]"
    return f"v[{V_HX+4*(ks-28)}:{V_HX+4*(ks-28)+3}]"

def emit_seq(a, items, pre_issued, fillers, tail_reads):
    D = NRING
    allreads = [r for (_, r) in items] + tail_reads
    n = len(items)
    issued = pre_issued
    while issued < min(D, len(allreads)):
        for r in allreads[issued]: a(r)
        issued += 1
    for i in range(n):
        cnt = sum(len(allreads[k]) for k in range(i + 1, issued))
        a(f"s_waitcnt lgkmcnt({cnt})")
        a(items[i][0])
        if issued < len(allreads) and issued == i + D:
            for r in allreads[issued]: a(r)
            issued += 1
        for f in fillers.get(i, []):
            a(f)
    return issued - n

def gen_k2(a):
    kernel_begin(a, "attn_kernel")
    a(f"""
    s_cmp_ge_u32 s2, 256
    s_cbranch_scc1 Lk2_end
    s_load_dwordx2 s[36:37], s[0:1], 8      ; K
    s_load_dwordx2 s[38:39], s[0:1], 16     ; V
    s_load_dwordx2 s[40:41], s[0:1], 24     ; wq
    s_load_dwordx2 s[42:43], s[0:1], 112    ; ws
    s_and_b32 s{S_HEAD}, s2, 7
    s_lshr_b32 s{S_T0}, s2, 6
    s_lshl_b32 s{S_T0}, s{S_T0}, 3
    s_or_b32 s{S_HEAD}, s{S_HEAD}, s{S_T0}
    s_lshr_b32 s{S_QB}, s2, 3
    s_and_b32 s{S_QB}, s{S_QB}, 7
    v_lshrrev_b32 v1, 6, v0
    s_nop 0
    v_readfirstlane_b32 s{S_W}, v1
    v_and_b32 v0, 63, v0
    s_lshl_b32 s{S_W1K}, s{S_W}, 10
    s_mov_b32 s{S_C}, {f32hex(SCALE_C):#x}
    s_mov_b32 s{S_SCALE}, {f32hex(128 ** -0.5):#x}
    s_mov_b32 s{S_L2E}, {f32hex(1.4426950408889634):#x}
    """)
    a(f"""
    v_lshlrev_b32 v{V_LANE16}, 4, v0
    v_lshrrev_b32 v20, 4, v0            ; i>>4 (0..3)
    v_and_b32 v21, 15, v0               ; i&15
    s_lshl_b32 s{S_T0}, s{S_W}, 2
    v_add_u32 v22, s{S_T0}, v20
    v_and_b32 v22, 15, v22
    v_xor_b32 v22, v22, v21
    v_lshlrev_b32 v22, 4, v22
    v_lshlrev_b32 v23, 8, v20
    v_add_u32 v22, v22, v23
    v_add_u32 v{V_KDMA}, s{S_W1K}, v22
    v_lshlrev_b32 v22, 2, v20
    v_xor_b32 v22, v22, v21
    v_lshlrev_b32 v22, 4, v22
    v_add_u32 v{V_VDMA}, v22, v23
    v_add_u32 v{V_VDMA}, s{S_W1K}, v{V_VDMA}
    v_lshlrev_b32 v23, 13, v20
    v_add_u32 v{V_WDMA}, v22, v23
    s_lshl_b32 s{S_T0}, s{S_W}, 15
    v_add_u32 v{V_WDMA}, s{S_T0}, v{V_WDMA}
    v_and_b32 v20, 31, v0
    v_lshlrev_b32 v20, 8, v20
    v_lshrrev_b32 v22, 5, v0
    v_xor_b32 v23, v22, v21
    v_lshlrev_b32 v23, 4, v23
    v_add_u32 v{V_KA}, v20, v23
    """)
    for ks in range(1, 8):
        a(f"v_xor_b32 v{V_KA+ks}, {ks*32}, v{V_KA}")
    a(f"""
    v_lshrrev_b32 v20, 2, v21           ; r
    v_lshrrev_b32 v23, 4, v0
    v_and_b32 v23, 1, v23
    v_lshlrev_b32 v23, 5, v23           ; 32g
    v_and_b32 v21, 3, v0
    v_lshlrev_b32 v21, 3, v21           ; 8c
    v_add_u32 v21, v21, v23             ; 32g+8c
    v_lshlrev_b32 v23, 8, v20           ; r*256
    v_add_u32 v21, v21, v23             ; r*256+32g+8c
    v_lshlrev_b32 v23, 10, v22          ; u*1024
    """)
    for t in range(4):
        a(f"v_xor_b32 v{V_VA+t}, {t}, v20")
        a(f"v_lshlrev_b32 v{V_VA+t}, 6, v{V_VA+t}")
        a(f"v_add_u32 v{V_VA+t}, v{V_VA+t}, v21")
        a(f"v_add_u32 v{V_VA+t}, v{V_VA+t}, v23")
        a(f"v_add_u32 v{V_PA+t}, v{V_VA+t}, v23")
        a(f"v_add_u32 v{V_VA+t}, 0x10000, v{V_VA+t}")
        a(f"v_add_u32 v{15+t}, 0x10000, v{V_PA+t}")
    a("s_waitcnt lgkmcnt(0)")
    a(f"""
    s_lshl_b32 s{S_T0}, s{S_HEAD}, 19
    s_add_u32 s{S_SRDK}, s36, s{S_T0}
    s_addc_u32 s{S_SRDK+1}, s37, 0
    s_mov_b32 s{S_SRDK+2}, 0x80000
    s_mov_b32 s{S_SRDK+3}, 0x00020000
    s_add_u32 s{S_SRDV}, s38, s{S_T0}
    s_addc_u32 s{S_SRDV+1}, s39, 0
    s_mov_b32 s{S_SRDV+2}, 0x80000
    s_mov_b32 s{S_SRDV+3}, 0x00020000
    s_lshl_b32 s{S_T0}, s{S_HEAD}, 8
    s_add_u32 s{S_SRDW}, s40, s{S_T0}
    s_addc_u32 s{S_SRDW+1}, s41, 0
    s_sub_u32 s{S_SRDW+2}, 0x400000, s{S_T0}
    s_mov_b32 s{S_SRDW+3}, 0x00020000
    """)
    srd(a, S_SRDH, 42, 2048 * 512 * 2, WS_H1F)
    srd(a, S_SRDO, 42, 2048 * 4096 * 2, WS_OF)
    wslot = [KSLOT[0], KSLOT[1], KSLOT[2], VSLOT[0], VSLOT[1], KSLOT[3], VSLOT[2], VSLOT[3]]
    a(f"s_mov_b32 s{S_T1}, 0")
    def dma_w(c):
        dma(a, S_SRDW, V_WDMA, S_T1, 0, wslot[c])
        dma(a, S_SRDW, V_WDMA, S_T1, 262144, wslot[c] + 8192)
        a(f"s_add_u32 s{S_T1}, s{S_T1}, 524288")
    for c in range(4): dma_w(c)
    a(f"""
    s_lshl_b32 s{S_T2}, s{S_QB}, 3
    s_add_u32 s{S_T2}, s{S_T2}, s{S_W}
    s_lshl_b32 s{S_T2}, s{S_T2}, 15
    """)
    for ks in range(32):
        a(f"buffer_load_dwordx4 {hfrag(ks)}, v{V_LANE16}, s[{S_SRDH}:{S_SRDH+3}], s{S_T2} offen offset:{(ks%4)*1024}")
        if ks % 4 == 3 and ks < 31:
            a(f"s_add_u32 s{S_T2}, s{S_T2}, 4096")
    for c in range(4, 8): dma_w(c)
    a(f"s_mov_b32 s{S_KOFF}, 0")
    a(f"s_mov_b32 s{S_VOFF}, 0")
    a("s_waitcnt vmcnt(8)")
    a("s_barrier")
    g = 0
    for grp in range(2):
        items = []
        for c in range(4 * grp, 4 * grp + 4):
            for s in range(4):
                for t in range(4):
                    d = V_S[0] + 16 * t
                    first = (c == 0 and s == 0)
                    csrc = "0" if first else f"v[{d}:{d+15}]"
                    b = ring(g)
                    items.append((f"v_mfma_f32_32x32x16_bf16 v[{d}:{d+15}], v[{b}:{b+3}], {hfrag(4*c+s)}, {csrc}",
                                  wread(g, wslot[c], s, t)))
                    g += 1
        fill = {}
        if grp == 1:
            pass
        emit_seq(a, items, 0, fill, [])
        if grp == 0:
            a("s_waitcnt vmcnt(0)")
            a("s_barrier")
            dma_k(a, 0); dma_k(a, 1); dma_k(a, 2); dma_v(a, 0)
    a("s_nop 15")
    for t in range(4):
        for hh in range(2):
            base = V_S[0] + 16 * t + 8 * hh
            a(f"v_cvt_pk_bf16_f32 v20, v{base}, v{base+1}")
            a(f"v_cvt_pk_bf16_f32 v21, v{base+2}, v{base+3}")
            a(f"v_cvt_pk_bf16_f32 v22, v{base+4}, v{base+5}")
            a(f"v_cvt_pk_bf16_f32 v23, v{base+6}, v{base+7}")
            a("s_nop 1")
            a("v_permlane32_swap_b32 v20, v22")
            a("v_permlane32_swap_b32 v21, v23")
            a("s_nop 1")
            ks = 2 * t + hh
            for x in range(4):
                a(f"v_accvgpr_write_b32 a{A_Q+4*ks+x}, v{20+x}")
    for i in range(64):
        a(f"v_accvgpr_write_b32 a{A_O+i}, 0")
    a(f"""
    v_mov_b32 v{V_M}, 0xff800000
    v_mov_b32 v{V_MTHR}, 0xff800000
    v_mov_b32 v{V_L}, 0
    v_mov_b32 v{V_NMC}, 0
    s_waitcnt vmcnt(0)
    s_barrier
    """)
    dma_v(a, 1); dma_k(a, 3); dma_v(a, 2)

    gctr = [0]
    def qk_items(tile, sdst):
        items = []
        for kb in range(2):
            for ks in range(8):
                d = V_S[sdst] + 16 * kb
                csrc = "0" if ks == 0 else f"v[{d}:{d+15}]"
                gg = gctr[0]; gctr[0] += 1
                b = ring(gg)
                items.append((f"v_mfma_f32_32x32x16_bf16 v[{d}:{d+15}], v[{b}:{b+3}], a[{A_Q+4*ks}:{A_Q+4*ks+3}], {csrc}",
                              kread(gg, tile % 4, kb, ks)))
        return items
    def pv_items(tile):
        items = []
        for s in range(4):
            for t in range(4):
                d = A_O + 16 * t
                gg = gctr[0]; gctr[0] += 1
                b = ring(gg)
                items.append((f"v_mfma_f32_32x32x16_bf16 a[{d}:{d+15}], v[{b}:{b+3}], v[{V_P+4*s}:{V_P+4*s+3}], a[{d}:{d+15}]",
                              vread(gg, tile % 4, s, t)))
        return items
    def peek_k_reads(tile):
        save = gctr[0]
        it = qk_items(tile, 0)
        gctr[0] = save
        return [r for (_, r) in it[:NRING]]

    def max_ops(sreg):
        ops = []
        b = V_S[sreg]
        ops.append(f"v_max3_f32 v{V_MX}, v{b}, v{b+1}, v{b+2}")
        for i in range(3, 31, 2):
            ops.append(f"v_max3_f32 v{V_MX}, v{V_MX}, v{b+i}, v{b+i+1}")
        ops.append(f"v_max_f32 v{V_MX}, v{V_MX}, v{b+31}")
        return ops

    def rare_path(lbl_rare, lbl_back):
        r = []
        r.append(f"{lbl_rare}:")
        body = f"""
        s_nop 15
        v_max_f32 v{V_MX}, v{V_MX}, v{V_M}
        v_mov_b32 v20, v{V_MX}
        v_mov_b32 v21, v{V_MX}
        s_nop 1
        v_permlane32_swap_b32 v20, v21
        s_nop 1
        v_max_f32 v{V_MX}, v20, v21
        v_sub_f32 v20, v{V_M}, v{V_MX}
        v_mul_f32 v20, s{S_C}, v20
        v_exp_f32 v20, v20
        v_mov_b32 v{V_M}, v{V_MX}
        v_mul_f32 v{V_NMC}, s{S_C}, v{V_MX}
        v_sub_f32 v{V_NMC}, 0, v{V_NMC}
        v_add_f32 v{V_MTHR}, {f32hex(THR):#x}, v{V_MX}
        v_mul_f32 v{V_L}, v{V_L}, v20
        """
        r += ["    " + l.strip() for l in body.strip().split("\n")]
        for i in range(64):
            r.append(f"    v_accvgpr_read_b32 v21, a{A_O+i}")
            r.append(f"    v_mul_f32 v21, v21, v20")
            r.append(f"    v_accvgpr_write_b32 a{A_O+i}, v21")
        r.append("    s_nop 1")
        r.append(f"    s_branch {lbl_back}")
        return r

    rare_blocks = []
    def check_and_branch():
        lr = a.newlabel("rare"); lb = a.newlabel("back")
        a(f"v_cmp_gt_f32 vcc, v{V_MX}, v{V_MTHR}")
        a(f"s_cbranch_vccnz {lr}")
        a.label(lb)
        rare_blocks.extend(rare_path(lr, lb))

    items = qk_items(0, 0)
    pre = emit_seq(a, items, 0, {}, peek_k_reads(1))
    a("s_nop 15")
    for op in max_ops(0): a(op)
    check_and_branch()

    def softmax_fillers(scur):
        b = V_S[scur]
        fa = {i: [] for i in range(19)}
        for i in range(16):
            for x in (2 * i, 2 * i + 1):
                fa[i].append(f"v_cvt_pk_bf16_f32 v{b+x}, 0, v{b+x}")
            for x in (2 * i, 2 * i + 1):
                fa[i].append(f"v_mul_f32 v{b+x}, s{S_SCALE}, v{b+x}")
            for x in (2 * i, 2 * i + 1):
                fa[i + 1].append(f"v_cvt_pk_bf16_f32 v{b+x}, 0, v{b+x}")
            for x in (2 * i, 2 * i + 1):
                fa[i + 1].append(f"v_fma_f32 v{b+x}, v{b+x}, s{S_L2E}, v{V_NMC}")
            for x in (2 * i, 2 * i + 1):
                fa[i + 2].append(f"v_exp_f32 v{b+x}, v{b+x}")
            for x in (2 * i, 2 * i + 1):
                fa[i + 3].append(f"v_add_f32 v{V_L}, v{V_L}, v{b+x}")
            fa[i + 3].append(f"v_cvt_pk_bf16_f32 v{V_P+i}, v{b+2*i}, v{b+2*i+1}")
        return fa

    def iteration(j, pre, last=False, vm=4, do_k=True, do_v=True):
        scur = j & 1; snxt = 1 - scur
        a(f"s_waitcnt vmcnt({vm})")
        a("s_barrier")
        fa = softmax_fillers(scur)
        dmas = []
        if not last:
            itemsA = qk_items(j + 1, snxt)
            save = gctr[0]
            itemsB = pv_items(j)
            gctr[0] = save
            fillA = {i: fa[i] for i in range(16)}
            a2 = Asm()
            if do_k: dma_k(a2, j % 4)
            fillA[1] = fillA[1] + [l.strip() for l in a2.lines]
            a2 = Asm()
            if do_v: dma_v(a2, (j + 3) % 4)
            fillA[6] = fillA[6] + [l.strip() for l in a2.lines]
            pre = emit_seq(a, itemsA, pre, fillA, [r for (_, r) in itemsB[:NRING]])
            itemsB = pv_items(j)
            fillB = {i: [] for i in range(16)}
            fillB[0] += fa[16]; fillB[1] += fa[17]; fillB[2] += fa[18]
            mo = max_ops(snxt)
            for k, op in enumerate(mo):
                slot = 2 + k * 12 // 16
                fillB[slot].append(op)
            nxt = peek_k_reads(j + 2) if j + 2 <= 31 + 1000 else []
            pre = emit_seq(a, itemsB, pre, fillB, nxt if not iteration.no_next else [])
            check_and_branch()
        else:
            for i in range(19):
                for f in fa[i]: a(f)
            itemsB = pv_items(j)
            a("s_nop 1")
            pre = emit_seq(a, itemsB, 0, {}, [])
        return pre
    iteration.no_next = False

    a(f"s_mov_b32 s{S_CNT}, 7")
    a.label("Lk2_loop")
    g_at_loop = gctr[0]
    assert g_at_loop % NRING == 0
    p = pre
    for jj in range(4):
        p = iteration(jj, p)
    assert p == pre, (p, pre)
    assert gctr[0] % NRING == 0
    a(f"s_sub_u32 s{S_CNT}, s{S_CNT}, 1")
    a(f"s_cmp_lg_u32 s{S_CNT}, 0")
    a("s_cbranch_scc1 Lk2_loop")
    p = iteration(28, p, vm=4, do_k=False, do_v=True)
    p = iteration(29, p, vm=2, do_k=False, do_v=False)
    iteration.no_next = True
    p = iteration(30, p, vm=0, do_k=False, do_v=False)
    p = iteration(31, p, last=True, vm=0)
    a(f"""
    v_mov_b32 v20, v{V_L}
    v_mov_b32 v21, v{V_L}
    s_nop 1
    v_permlane32_swap_b32 v20, v21
    s_nop 1
    v_add_f32 v20, v20, v21
    v_rcp_f32 v20, v20
    s_lshl_b32 s{S_T2}, s{S_QB}, 3
    s_add_u32 s{S_T2}, s{S_T2}, s{S_W}
    s_lshl_b32 s{S_T2}, s{S_T2}, 18
    s_lshl_b32 s{S_T0}, s{S_HEAD}, 13
    s_add_u32 s{S_T2}, s{S_T2}, s{S_T0}
    s_nop 15
    """)
    for t in range(4):
        for hh in range(2):
            rb = V_S[0] + 8 * (2 * t + hh)
            for x in range(8):
                a(f"v_accvgpr_read_b32 v{rb+x}, a{A_O+16*t+8*hh+x}")
            for x in range(8):
                a(f"v_mul_f32 v{rb+x}, v{rb+x}, v20")
            for x in range(4):
                a(f"v_cvt_pk_bf16_f32 v{rb+x}, v{rb+2*x}, v{rb+2*x+1}")
            k = 2 * t + hh
            if k == 4:
                a(f"s_add_u32 s{S_T2}, s{S_T2}, 4096")
            a(f"buffer_store_dwordx4 v[{rb}:{rb+3}], v{V_LANE16}, s[{S_SRDO}:{S_SRDO+3}], s{S_T2} offen offset:{(k%4)*1024}")
    a.label("Lk2_end")
    a("s_endpgm")
    for l in rare_blocks: a.raw(l)
    return kernel_desc("attn_kernel", NVGPR + NAGPR, sgpr=64, accum=NVGPR)
```

```python
from genlib import *
from gen_small import *

def gen_k3(a):
    kernel_begin(a, "oproj_kernel")
    S_W = 3; S_MT = 4; S_NT = 5; S_KSP = 6; S_T0 = 7
    S_SRDW = 8; S_SRDO = 12; S_SRDP = 16; S_WOFF = 20; S_OOFF = 21; S_T1 = 22; S_W1K = 23; S_W4K = 24
    V_WDMA = 1; V_L16 = 2; V_AA = 4
    V_BA = 6
    V_F = 8
    V_ACC = 56
    a(f"""
    s_cmp_ge_u32 s2, 256
    s_cbranch_scc1 Lk3_end
    s_load_dwordx2 s[36:37], s[0:1], 32     ; wo
    s_load_dwordx2 s[42:43], s[0:1], 112    ; ws
    s_and_b32 s{S_T0}, s2, 7
    s_and_b32 s{S_KSP}, s{S_T0}, 3
    s_lshr_b32 s{S_T0}, s{S_T0}, 2
    s_lshl_b32 s{S_MT}, s{S_T0}, 3
    s_lshr_b32 s{S_T0}, s2, 3
    s_and_b32 s{S_NT}, s{S_T0}, 3
    s_lshr_b32 s{S_T0}, s{S_T0}, 2
    s_add_u32 s{S_MT}, s{S_MT}, s{S_T0}
    v_lshrrev_b32 v1, 6, v0
    s_nop 0
    v_readfirstlane_b32 s{S_W}, v1
    v_and_b32 v0, 63, v0
    s_lshl_b32 s{S_W1K}, s{S_W}, 10
    s_lshl_b32 s{S_W4K}, s{S_W}, 12
    v_lshlrev_b32 v{V_L16}, 4, v0
    v_lshrrev_b32 v20, 4, v0            ; i>>4
    v_and_b32 v21, 15, v0
    v_lshlrev_b32 v22, 2, v20
    v_xor_b32 v22, v22, v21
    v_lshlrev_b32 v22, 4, v22
    v_lshlrev_b32 v23, 10, v20
    v_add_u32 v{V_WDMA}, v22, v23       ; (i>>4)*1024 + swz*16
    ; tr read addr: (4u + r)*256 + 64*(t^r) + 32g + 8c ; t = 2*wn + x
    v_lshrrev_b32 v20, 2, v21           ; r
    v_lshrrev_b32 v23, 4, v0
    v_and_b32 v23, 1, v23
    v_lshlrev_b32 v23, 5, v23
    v_and_b32 v21, 3, v0
    v_lshlrev_b32 v21, 3, v21
    v_add_u32 v21, v21, v23
    v_lshlrev_b32 v23, 8, v20
    v_add_u32 v21, v21, v23
    v_lshrrev_b32 v22, 5, v0
    v_lshlrev_b32 v23, 10, v22
    v_add_u32 v21, v21, v23
    s_and_b32 s{S_T0}, s{S_W}, 1        ; wn
    s_lshl_b32 s{S_T0}, s{S_T0}, 1
    v_xor_b32 v22, s{S_T0}, v20
    v_lshlrev_b32 v22, 6, v22
    v_add_u32 v{V_AA}, v22, v21
    s_add_u32 s{S_T0}, s{S_T0}, 1
    v_xor_b32 v22, s{S_T0}, v20
    v_lshlrev_b32 v22, 6, v22
    v_add_u32 v{V_AA+1}, v22, v21
    s_lshr_b32 s{S_T0}, s{S_W}, 1
    s_lshl_b32 s{S_T0}, s{S_T0}, 13
    s_add_u32 s{S_T0}, s{S_T0}, 16384
    v_add_u32 v{V_BA}, s{S_T0}, v{V_L16}
    s_waitcnt lgkmcnt(0)
    """)
    srd(a, S_SRDW, 36, 4096 * 512 * 2)
    srd(a, S_SRDO, 42, 2048 * 4096 * 2, WS_OF)
    srd(a, S_SRDP, 42, 4 * 2048 * 512 * 4, WS_PART)
    a(f"""
    s_lshl_b32 s{S_WOFF}, s{S_KSP}, 20
    s_lshl_b32 s{S_T0}, s{S_NT}, 8
    s_add_u32 s{S_WOFF}, s{S_WOFF}, s{S_T0}
    s_add_u32 s{S_WOFF}, s{S_WOFF}, s{S_W4K}
    s_lshl_b32 s{S_OOFF}, s{S_MT}, 2
    s_add_u32 s{S_OOFF}, s{S_OOFF}, s{S_W}
    s_lshl_b32 s{S_OOFF}, s{S_OOFF}, 18
    s_lshl_b32 s{S_T0}, s{S_KSP}, 16
    s_add_u32 s{S_OOFF}, s{S_OOFF}, s{S_T0}
    """)
    def dma_stage(st):
        base = (st % 4) * 32768
        for x in range(4):
            a(f"s_add_u32 m0, s{S_W1K}, {base + x*4096}")
            a(f"s_add_u32 s{S_T1}, s{S_WOFF}, {x*16384}")
            a(f"buffer_load_dwordx4 v{V_WDMA}, s[{S_SRDW}:{S_SRDW+3}], s{S_T1} offen lds")
        a(f"s_add_u32 m0, s{S_W4K}, {base + 16384}")
        a(f"s_add_u32 s{S_WOFF}, s{S_WOFF}, 65536")
        for x in range(4):
            a(f"buffer_load_dwordx4 v{V_L16}, s[{S_SRDO}:{S_SRDO+3}], s{S_OOFF} offen offset:{x*1024} lds")
        a(f"s_add_u32 s{S_OOFF}, s{S_OOFF}, 4096")
    for st in range(3): dma_stage(st)
    def reads(gk):
        st, s = gk // 4, gk % 4
        base = (st % 4) * 32768
        f = V_F + 16 * (gk % 3)
        r = []
        for x in range(2):
            r.append((f + 4 * x, V_AA + x, base + s * 4096, 'tr'))
        for x in range(2):
            r.append((f + 8 + 4 * x, V_BA, base + x * 4096 + s * 1024, 'b128'))
        return r
    a(f"v_add_u32 v3, 0x10000, v{V_BA}")
    a(f"v_add_u32 v24, 0x10000, v{V_AA}")
    a(f"v_add_u32 v25, 0x10000, v{V_AA+1}")
    a(f"v_mov_b32 v120, v24")
    a(f"v_mov_b32 v121, v25")
    def emit_reads(gk):
        n = 0
        for (dst, ar, off, kind) in reads(gk):
            if off >= 65536 - 16384 and kind == 'b128' and off + 16384 + 8192 > 65536:
                off -= 65536; ar = 3
            elif off >= 65536:
                off -= 65536; ar = 120 + (ar - V_AA)
            if kind == 'tr':
                a(f"ds_read_b64_tr_b16 v[{dst}:{dst+1}], v{ar} offset:{off}")
                a(f"ds_read_b64_tr_b16 v[{dst+2}:{dst+3}], v{ar} offset:{off+2048}")
                n += 2
            else:
                assert off >= 0, off
                a(f"ds_read_b128 v[{dst}:{dst+3}], v{ar} offset:{off}")
                n += 1
        return n
    NK = 64
    for st in range(16):
        a(f"s_waitcnt vmcnt({8 if st < 14 else 0})")
        a("s_barrier")
        if st == 0:
            emit_reads(0); emit_reads(1)
        if st + 3 < 16:
            dma_stage(st + 3)
        for s in range(4):
            gk = st * 4 + s
            a(f"s_waitcnt lgkmcnt({6 if gk + 1 < NK else 0})")
            f = V_F + 16 * (gk % 3)
            for x in range(2):
                for y in range(2):
                    d = V_ACC + 16 * (2 * x + y)
                    c = "0" if gk == 0 else f"v[{d}:{d+15}]"
                    a(f"v_mfma_f32_32x32x16_bf16 v[{d}:{d+15}], v[{f+4*x}:{f+4*x+3}], v[{f+8+4*y}:{f+8+4*y+3}], {c}")
            if gk + 2 < NK:
                emit_reads(gk + 2)
    a(f"""
    s_nop 15
    v_and_b32 v20, 31, v0
    v_lshlrev_b32 v20, 11, v20
    v_lshrrev_b32 v21, 5, v0
    v_lshlrev_b32 v21, 4, v21
    v_add_u32 v20, v20, v21
    s_lshl_b32 s{S_T0}, s{S_KSP}, 22
    s_lshl_b32 s{S_T1}, s{S_MT}, 18
    s_add_u32 s{S_T0}, s{S_T0}, s{S_T1}
    s_lshr_b32 s{S_T1}, s{S_W}, 1
    s_lshl_b32 s{S_T1}, s{S_T1}, 17
    s_add_u32 s{S_T0}, s{S_T0}, s{S_T1}
    s_lshl_b32 s{S_T1}, s{S_NT}, 9
    s_add_u32 s{S_T0}, s{S_T0}, s{S_T1}
    s_and_b32 s{S_T1}, s{S_W}, 1
    s_lshl_b32 s{S_T1}, s{S_T1}, 8
    s_add_u32 s{S_T0}, s{S_T0}, s{S_T1}
    s_add_u32 s{S_T1}, s{S_T0}, 65536
    """)
    for x in range(2):
        for y in range(2):
            d = V_ACC + 16 * (2 * x + y)
            for q in range(4):
                a(f"buffer_store_dwordx4 v[{d+4*q}:{d+4*q+3}], v20, s[{S_SRDP}:{S_SRDP+3}], s{S_T1 if y else S_T0} offen offset:{x*128 + q*32}")
    a.label("Lk3_end")
    a("s_endpgm")
    return kernel_desc("oproj_kernel", 128, sgpr=64)

def gen_k4(a):
    kernel_begin(a, "post_kernel")
    a("""
    s_cmp_ge_u32 s2, 512
    s_cbranch_scc1 Lk4_end
    s_load_dwordx2 s[4:5], s[0:1], 0      ; x
    s_load_dwordx2 s[6:7], s[0:1], 48     ; w_r
    s_load_dwordx2 s[8:9], s[0:1], 112    ; ws
    s_load_dwordx2 s[10:11], s[0:1], 96   ; out
    v_and_b32 v1, 63, v0
    v_lshrrev_b32 v2, 6, v0
    s_lshl_b32 s44, s2, 2
    v_add_u32 v2, s44, v2            ; row
    v_lshlrev_b32 v3, 10, v2
    v_lshlrev_b32 v4, 4, v1
    v_add_u32 v3, v3, v4
    v_lshlrev_b32 v5, 5, v1
    v_lshlrev_b32 v6, 1, v3
    s_waitcnt lgkmcnt(0)
    """)
    srd(a, 12, 4, 2048 * 512 * 2)
    srd(a, 16, 8, 3072 * 4, WS_MOD)
    srd(a, 20, 8, 4 * 2048 * 512 * 4, WS_PART)
    srd(a, 24, 6, 1024)
    srd(a, 28, 10, 2048 * 512 * 2)
    srd(a, 32, 8, 2048 * 512 * 2, WS_X2)
    srd(a, 36, 8, 2048 * 512 * 2, WS_H2)
    srd(a, 40, 8, 2048 * 4, WS_R)
    a("s_mov_b32 s45, 0")
    for p in range(4):
        a(f"buffer_load_dwordx4 v[{64+8*p}:{67+8*p}], v6, s[20:23], s45 offen")
        a(f"buffer_load_dwordx4 v[{68+8*p}:{71+8*p}], v6, s[20:23], s45 offen offset:16")
        if p < 3: a("s_add_u32 s45, s45, 0x400000")
    a("""
    buffer_load_dwordx4 v[8:11], v3, s[12:15], 0 offen
    buffer_load_dwordx4 v[96:99], v4, s[24:27], 0 offen
    s_mov_b32 s45, 4096
    buffer_load_dwordx4 v[100:103], v5, s[16:19], s45 offen           ; ga
    buffer_load_dwordx4 v[104:107], v5, s[16:19], s45 offen offset:16
    buffer_load_dwordx4 v[16:19], v5, s[16:19], s45 offen offset:2048  ; sb
    buffer_load_dwordx4 v[20:23], v5, s[16:19], s45 offen offset:2064
    s_mov_b32 s45, 8192
    buffer_load_dwordx4 v[24:27], v5, s[16:19], s45 offen             ; cb
    buffer_load_dwordx4 v[28:31], v5, s[16:19], s45 offen offset:16
    buffer_load_dwordx4 v[108:111], v5, s[16:19], s45 offen offset:2048 ; gb
    buffer_load_dwordx4 v[112:115], v5, s[16:19], s45 offen offset:2064
    s_waitcnt vmcnt(0)
    """)
    for j in range(4):
        unpack_bf16(a, 32 + 2 * j, 33 + 2 * j, 8 + j)
    for j in range(8):
        a(f"v_add_f32 v{64+j}, v{64+j}, v{72+j}")
        a(f"v_add_f32 v{80+j}, v{80+j}, v{88+j}")
        a(f"v_add_f32 v{64+j}, v{64+j}, v{80+j}")
        round_bf16(a, 64 + j, 64 + j)
        a(f"v_mul_f32 v{64+j}, v{64+j}, v{100+j}")
        round_bf16(a, 64 + j, 64 + j)
        a(f"v_add_f32 v{32+j}, v{32+j}, v{64+j}")
        round_bf16(a, 32 + j, 32 + j)
    ln_mod(a, 32, 12, 24, 16, 40)
    for j in range(4):
        unpack_bf16(a, 64 + 2 * j, 65 + 2 * j, 96 + j)
    a("v_mul_f32 v72, v40, v64")
    for j in range(1, 8):
        a(f"v_fmac_f32 v72, v{40+j}, v{64+j}")
    wave_allreduce(a, 72, 73, 74)
    round_bf16(a, 72, 72)
    for j in range(4):
        a(f"v_cvt_pk_bf16_f32 v{48+j}, v{40+2*j}, v{41+2*j}")
        a(f"v_cvt_pk_bf16_f32 v{52+j}, v{32+2*j}, v{33+2*j}")
    a("buffer_store_dwordx4 v[48:51], v3, s[36:39], 0 offen")
    a("buffer_store_dwordx4 v[52:55], v3, s[32:35], 0 offen")
    for j in range(8):
        a(f"v_mul_f32 v{64+j}, v{40+j}, v{108+j}")
        round_bf16(a, 64 + j, 64 + j)
        a(f"v_add_f32 v{64+j}, v{64+j}, v{32+j}")
    for j in range(4):
        a(f"v_cvt_pk_bf16_f32 v{56+j}, v{64+2*j}, v{65+2*j}")
    a("buffer_store_dwordx4 v[56:59], v3, s[28:31], 0 offen")
    a("""
    v_lshlrev_b32 v2, 2, v2
    v_cmp_eq_u32 vcc, 0, v1
    s_and_saveexec_b64 s[46:47], vcc
    buffer_store_dword v72, v2, s[40:43], 0 offen
    """)
    a.label("Lk4_end")
    a("s_endpgm")
    return kernel_desc("post_kernel", 120, sgpr=64)

def top8(a, vlane, srd_r, v0, sidx, skey):
    K = v0; T = v0 + 32; T1 = v0 + 33; T2 = v0 + 34; T3 = v0 + 35
    a(f"v_lshlrev_b32 v{T}, 7, v{vlane}")
    for i in range(8):
        a(f"buffer_load_dwordx4 v[{K+4*i}:{K+4*i+3}], v{T}, s[{srd_r}:{srd_r+3}], 0 offen offset:{16*i}")
    a(f"v_lshlrev_b32 v{T1}, 5, v{vlane}")
    a(f"v_sub_u32 v{T1}, 2047, v{T1}")
    a("s_waitcnt vmcnt(0)")
    for i in range(32):
        a(f"v_ashrrev_i32 v{T2}, 31, v{K+i}")
        a(f"v_or_b32 v{T2}, 0x80000000, v{T2}")
        a(f"v_xor_b32 v{K+i}, v{K+i}, v{T2}")
        a(f"v_and_b32 v{K+i}, 0xffff0000, v{K+i}")
        a(f"v_subrev_u32 v{T2}, {i}, v{T1}")
        a(f"v_or_b32 v{K+i}, v{K+i}, v{T2}")
    for rnd in range(8):
        if rnd == 0:
            a(f"v_max3_u32 v{T}, v{K}, v{K+1}, v{K+2}")
            for i in range(3, 31, 2):
                a(f"v_max3_u32 v{T}, v{T}, v{K+i}, v{K+i+1}")
            a(f"v_max_u32 v{T}, v{T}, v{K+31}")
            wave_allreduce(a, T, T1, T2, op="v_max_u32")
            a("s_nop 0")
            a(f"v_readfirstlane_b32 s{skey}, v{T}")
        else:
            a(f"s_sub_u32 s{sidx+rnd}, s{skey+rnd-1}, 1")
            a(f"v_sub_u32 v{T}, s{sidx+rnd}, v{K}")
            for i in range(1, 31, 2):
                a(f"v_sub_u32 v{T1}, s{sidx+rnd}, v{K+i}")
                a(f"v_sub_u32 v{T2}, s{sidx+rnd}, v{K+i+1}")
                a(f"v_min3_u32 v{T}, v{T}, v{T1}, v{T2}")
            a(f"v_sub_u32 v{T1}, s{sidx+rnd}, v{K+31}")
            a(f"v_min_u32 v{T}, v{T}, v{T1}")
            wave_allreduce(a, T, T1, T2, op="v_min_u32")
            a("s_nop 0")
            a(f"v_readfirstlane_b32 s{skey+rnd}, v{T}")
            a("s_nop 3")
            a(f"s_sub_u32 s{skey+rnd}, s{sidx+rnd}, s{skey+rnd}")
    a("s_nop 3")
    for rnd in range(8):
        a(f"s_and_b32 s{sidx+rnd}, s{skey+rnd}, 0x7ff")
        a(f"s_sub_u32 s{sidx+rnd}, 2047, s{sidx+rnd}")

def gen_k5(a):
    kernel_begin(a, "moe1_kernel")
    a("""
    s_cmp_ge_u32 s2, 56
    s_cbranch_scc1 Lk5_end
    s_load_dwordx2 s[4:5], s[0:1], 56     ; w_gate
    s_load_dwordx2 s[6:7], s[0:1], 64     ; w_up
    s_load_dwordx2 s[8:9], s[0:1], 112    ; ws
    v_and_b32 v1, 63, v0
    s_waitcnt lgkmcnt(0)
    """)
    srd(a, 12, 4, 512 * 1792 * 2)
    srd(a, 16, 6, 512 * 1792 * 2)
    srd(a, 20, 8, 2048 * 4, WS_R)
    srd(a, 24, 8, 2048 * 512 * 2, WS_H2)
    srd(a, 28, 8, 1792 * 8 * 2, WS_ACT)
    srd(a, 32, 8, 64, WS_IDX)
    a("""
    v_and_b32 v2, 15, v0
    v_lshrrev_b32 v3, 4, v0
    s_mov_b32 s36, 114688
    v_mul_lo_u32 v4, v3, s36
    v_lshlrev_b32 v5, 2, v2
    v_add_u32 v4, v4, v5
    s_lshl_b32 s37, s2, 6
    """)
    for kk in range(32):
        a(f"buffer_load_dword v{128+kk}, v4, s[12:15], s37 offen")
        a(f"buffer_load_dword v{160+kk}, v4, s[16:19], s37 offen")
        if kk < 31: a("s_add_u32 s37, s37, 3584")
    top8(a, 1, 20, 8, 40, 48)
    a("""
    v_lshrrev_b32 v5, 5, v0
    v_and_b32 v6, 31, v0
    """)
    a("v_mov_b32 v7, s40")
    for t in range(1, 8):
        a(f"v_cmp_eq_u32 vcc, {t}, v5")
        a(f"v_mov_b32 v44, s{40+t}")
        a("s_nop 0")
        a(f"v_cndmask_b32 v7, v7, v44, vcc")
    a("""
    v_lshlrev_b32 v7, 10, v7
    v_lshlrev_b32 v44, 5, v6
    v_add_u32 v7, v7, v44
    buffer_load_dwordx4 v[8:11], v7, s[24:27], 0 offen
    buffer_load_dwordx4 v[12:15], v7, s[24:27], 0 offen offset:16
    v_lshlrev_b32 v44, 9, v6          ; kq*16*32
    v_lshlrev_b32 v45, 2, v5
    v_add_u32 v44, v44, v45
    s_waitcnt vmcnt(0)
    """)
    for j in range(8):
        unpack_bf16(a, 16, 17, 8 + j)
        a(f"ds_write_b32 v44, v16 offset:{(2*j)*32}")
        a(f"ds_write_b32 v44, v17 offset:{(2*j+1)*32}")
    a("""
    s_cmp_lg_u32 s2, 0
    s_cbranch_scc1 Lk5_noidx
    v_cmp_gt_u32 vcc, 8, v0
    s_and_saveexec_b64 s[56:57], vcc
    s_cbranch_execz Lk5_noidx2
    """)
    a("v_mov_b32 v7, s40")
    for t in range(1, 8):
        a(f"v_cmp_eq_u32 vcc, {t}, v0")
        a(f"v_mov_b32 v45, s{40+t}")
        a("s_nop 0")
        a(f"v_cndmask_b32 v7, v7, v45, vcc")
    a(f"""
    v_lshlrev_b32 v45, 2, v7
    buffer_load_dword v46, v45, s[20:23], 0 offen
    v_lshlrev_b32 v45, 2, v0
    buffer_store_dword v7, v45, s[32:35], 0 offen
    s_waitcnt vmcnt(0)
    s_mov_b32 s36, {LOG2E:#x}
    v_mul_f32 v46, s36, v46
    v_exp_f32 v46, -v46
    s_nop 0
    v_add_f32 v46, 1.0, v46
    v_rcp_f32 v46, v46
    s_nop 0
    """)
    round_bf16(a, 46, 46)
    a("buffer_store_dword v46, v45, s[32:35], 0 offen offset:32")
    a.label("Lk5_noidx2")
    a("s_mov_b64 exec, -1")
    a.label("Lk5_noidx")
    a("""
    s_waitcnt lgkmcnt(0)
    s_barrier
    v_lshlrev_b32 v44, 10, v3         ; ks*32*32
    """)
    for i in range(32):
        a(f"v_mov_b32 v{64+i}, 0")
    for kk in range(32):
        xb = 8 + 8 * (kk % 2)
        if kk == 0:
            a(f"ds_read_b128 v[{xb}:{xb+3}], v44")
            a(f"ds_read_b128 v[{xb+4}:{xb+7}], v44 offset:16")
        if kk + 1 < 32:
            xn = 8 + 8 * ((kk + 1) % 2)
            a(f"ds_read_b128 v[{xn}:{xn+3}], v44 offset:{(kk+1)*32}")
            a(f"ds_read_b128 v[{xn+4}:{xn+7}], v44 offset:{(kk+1)*32+16}")
            a("s_waitcnt lgkmcnt(2)")
        else:
            a("s_waitcnt lgkmcnt(0)")
        unpack_bf16(a, 24, 25, 128 + kk)
        unpack_bf16(a, 26, 27, 160 + kk)
        for t in range(8):
            for c in range(4):
                a(f"v_fmac_f32 v{64+4*t+c}, v{xb+t}, v{24+c}")
    a("""
    v_lshlrev_b32 v44, 11, v3
    v_lshlrev_b32 v45, 4, v2
    v_add_u32 v44, v44, v45
    """)
    for t in range(8):
        a(f"ds_write_b128 v44, v[{64+4*t}:{67+4*t}] offset:{16384 + t*256}")
    a("""
    s_waitcnt lgkmcnt(0)
    s_barrier
    v_lshlrev_b32 v44, 8, v5
    v_lshrrev_b32 v45, 1, v6
    v_lshlrev_b32 v45, 4, v45
    v_add_u32 v44, v44, v45
    v_and_b32 v45, 1, v6
    v_lshlrev_b32 v45, 2, v45
    v_add_u32 v44, v44, v45
    """)
    for ks in range(16):
        a(f"ds_read_b32 v{64+ks}, v44 offset:{16384 + ks*2048}")
        a(f"ds_read_b32 v{80+ks}, v44 offset:{16384 + ks*2048 + 8}")
    a("s_waitcnt lgkmcnt(0)")
    for ks in range(1, 16):
        a(f"v_add_f32 v64, v64, v{64+ks}")
        a(f"v_add_f32 v80, v80, v{80+ks}")
    round_bf16(a, 64, 64)
    round_bf16(a, 80, 80)
    a(f"""
    s_mov_b32 s36, {LOG2E:#x}
    v_mul_f32 v65, s36, v64
    v_exp_f32 v65, -v65
    s_nop 0
    v_add_f32 v65, 1.0, v65
    v_rcp_f32 v65, v65
    s_nop 0
    v_mul_f32 v64, v64, v65
    """)
    round_bf16(a, 64, 64)
    a("""
    v_mul_f32 v64, v64, v80
    v_cvt_pk_bf16_f32 v64, v64, v64
    v_lshlrev_b32 v44, 4, v6
    v_lshlrev_b32 v45, 1, v5
    v_add_u32 v44, v44, v45
    s_lshl_b32 s37, s2, 9
    buffer_store_short v64, v44, s[28:31], s37 offen
    """)
    a.label("Lk5_end")
    a("s_endpgm")
    return kernel_desc("moe1_kernel", 192, sgpr=64)

def gen_k6(a):
    kernel_begin(a, "moe2_kernel")
    a("""
    s_cmp_ge_u32 s2, 32
    s_cbranch_scc1 Lk6_end
    s_load_dwordx2 s[4:5], s[0:1], 72     ; w_down
    s_load_dwordx2 s[8:9], s[0:1], 112    ; ws
    s_load_dwordx2 s[10:11], s[0:1], 96   ; out
    v_and_b32 v2, 7, v0               ; cp
    v_lshrrev_b32 v3, 3, v0
    s_mov_b32 s36, 57344
    v_mul_lo_u32 v4, v3, s36          ; ks*56*1024
    v_lshlrev_b32 v5, 2, v2
    v_add_u32 v4, v4, v5
    s_mov_b32 s36, 896
    v_mul_lo_u32 v6, v3, s36          ; ks*56*16
    s_lshl_b32 s37, s2, 5
    s_waitcnt lgkmcnt(0)
    """)
    srd(a, 12, 4, 1792 * 512 * 2)
    srd(a, 16, 8, 1792 * 8 * 2, WS_ACT)
    srd(a, 20, 8, 64, WS_IDX)
    srd(a, 24, 8, 2048 * 512 * 2, WS_H2)
    srd(a, 28, 8, 2048 * 512 * 2, WS_X2)
    srd(a, 32, 10, 2048 * 512 * 2)
    srd(a, 40, 8, 3072 * 4, WS_MOD)
    for i in range(16):
        a(f"v_mov_b32 v{64+i}, 0")
    for half in range(2):
        for kk in range(28):
            f = half * 28 + kk
            a(f"buffer_load_dword v{96+kk}, v4, s[12:15], s37 offen")
            a("s_add_u32 s37, s37, 1024")
            a(f"buffer_load_dwordx4 v[{128+4*kk}:{131+4*kk}], v6, s[16:19], 0 offen offset:{f*16}")
        for kk in range(28):
            a(f"s_waitcnt vmcnt({2*(27-kk)})")
            unpack_bf16(a, 8, 9, 96 + kk)
            for j in range(4):
                unpack_bf16(a, 10, 11, 128 + 4 * kk + j)
                a(f"v_fmac_f32 v{64+4*j}, v10, v8")
                a(f"v_fmac_f32 v{65+4*j}, v10, v9")
                a(f"v_fmac_f32 v{66+4*j}, v11, v8")
                a(f"v_fmac_f32 v{67+4*j}, v11, v9")
    a("""
    v_lshlrev_b32 v8, 9, v3
    v_lshlrev_b32 v9, 6, v2
    v_add_u32 v8, v8, v9
    """)
    for j in range(4):
        a(f"ds_write_b128 v8, v[{64+4*j}:{67+4*j}] offset:{16*j}")
    a("""
    s_waitcnt lgkmcnt(0)
    s_barrier
    v_cmp_gt_u32 vcc, 128, v0
    s_and_saveexec_b64 s[44:45], vcc
    s_cbranch_execz Lk6_end
    v_lshrrev_b32 v2, 4, v0           ; tok
    v_and_b32 v3, 15, v0              ; col
    v_lshrrev_b32 v8, 1, v3
    v_lshlrev_b32 v8, 6, v8
    v_lshlrev_b32 v9, 3, v2
    v_add_u32 v8, v8, v9
    v_and_b32 v9, 1, v3
    v_lshlrev_b32 v9, 2, v9
    v_add_u32 v8, v8, v9
    v_lshlrev_b32 v9, 2, v2
    buffer_load_dword v10, v9, s[20:23], 0 offen            ; idx
    buffer_load_dword v11, v9, s[20:23], 0 offen offset:32  ; rsel
    s_lshl_b32 s37, s2, 4
    v_add_u32 v12, s37, v3
    v_lshlrev_b32 v13, 2, v12
    s_mov_b32 s36, 10240
    buffer_load_dword v14, v13, s[40:43], s36 offen         ; gb
    """)
    for ks in range(32):
        a(f"ds_read_b32 v{64+ks}, v8 offset:{ks*512}")
    a("""
    s_waitcnt vmcnt(0)
    v_lshlrev_b32 v10, 10, v10
    v_lshlrev_b32 v13, 1, v12
    v_add_u32 v10, v10, v13
    buffer_load_ushort v15, v10, s[24:27], 0 offen          ; h2
    buffer_load_ushort v16, v10, s[28:31], 0 offen          ; x2
    s_waitcnt lgkmcnt(0)
    """)
    for ks in range(1, 32):
        a(f"v_add_f32 v64, v64, v{64+ks}")
    round_bf16(a, 64, 64)
    a("v_mul_f32 v64, v64, v11")
    round_bf16(a, 64, 64)
    a("""
    s_waitcnt vmcnt(0)
    v_lshlrev_b32 v15, 16, v15
    v_lshlrev_b32 v16, 16, v16
    v_add_f32 v64, v64, v15
    """)
    round_bf16(a, 64, 64)
    a("v_mul_f32 v64, v64, v14")
    round_bf16(a, 64, 64)
    a("""
    v_add_f32 v64, v64, v16
    v_cvt_pk_bf16_f32 v64, v64, v64
    buffer_store_short v64, v10, s[32:35], 0 offen
    """)
    a.label("Lk6_end")
    a("s_endpgm")
    return kernel_desc("moe2_kernel", 240, sgpr=64)

def rest_kernels():
    return [(gen_k3, "oproj_kernel", 256, 256, 131072),
            (gen_k4, "post_kernel", 512, 256, 0),
            (gen_k5, "moe1_kernel", 56, 256, 49152),
            (gen_k6, "moe2_kernel", 32, 256, 16384)]
```

```python
from genlib import *

WS_MOD  = 0
WS_H1F  = 1 << 20
WS_OF   = 4 << 20
WS_PART = 32 << 20
WS_X2   = 64 << 20
WS_H2   = 68 << 20
WS_R    = 72 << 20
WS_ACT  = 73 << 20
WS_IDX  = 74 << 20
LOG2E = 0x3fb8aa3b

def gen_k0(a):
    kernel_begin(a, "mod_kernel")
    a("""
    s_cmp_ge_u32 s2, 48
    s_cbranch_scc1 Lk0_end
    s_load_dwordx2 s[4:5], s[0:1], 80
    s_load_dwordx2 s[6:7], s[0:1], 88
    s_load_dwordx2 s[8:9], s[0:1], 112
    v_and_b32 v1, 7, v0
    v_lshrrev_b32 v2, 3, v0
    v_lshlrev_b32 v3, 5, v2
    s_mov_b32 s24, 98304
    v_mul_lo_u32 v28, v2, s24
    v_lshlrev_b32 v29, 4, v1
    v_add_u32 v28, v28, v29
    s_lshl_b32 s25, s2, 7
    s_waitcnt lgkmcnt(0)
    """)
    srd(a, 12, 4, 1024)
    srd(a, 16, 6, 512 * 3072 * 2)
    srd(a, 20, 8, 3072 * 4, WS_MOD)
    a("buffer_load_dwordx4 v[4:7], v3, s[12:15], 0 offen")
    a("buffer_load_dwordx4 v[8:11], v3, s[12:15], 0 offen offset:16")
    for kk in range(16):
        a(f"buffer_load_dwordx4 v[{32+4*kk}:{35+4*kk}], v28, s[16:19], s25 offen")
        if kk < 15:
            a("s_add_u32 s25, s25, 6144")
    a("s_waitcnt vmcnt(16)")
    for j in range(8):
        unpack_bf16(a, 12 + 2 * j, 13 + 2 * j, 4 + j)
    a(f"s_mov_b32 s26, {LOG2E:#x}")
    for k in range(16):
        v = 12 + k
        a(f"v_mul_f32 v30, s26, v{v}")
        a(f"v_exp_f32 v30, -v30")
        a("s_nop 0")
        a(f"v_add_f32 v30, 1.0, v30")
        a(f"v_rcp_f32 v30, v30")
        a("s_nop 0")
        a(f"v_mul_f32 v{v}, v{v}, v30")
        round_bf16(a, v, v)
    for j in range(8):
        a(f"v_mov_b32 v{96+j}, 0")
    for kk in range(16):
        a(f"s_waitcnt vmcnt({15-kk})")
        for j in range(4):
            unpack_bf16(a, 30, 31, 32 + 4 * kk + j)
            a(f"v_fmac_f32 v{96+2*j}, v{12+kk}, v30")
            a(f"v_fmac_f32 v{97+2*j}, v{12+kk}, v31")
    a("""
    v_lshlrev_b32 v3, 8, v2
    v_lshlrev_b32 v29, 5, v1
    v_add_u32 v3, v3, v29
    ds_write_b128 v3, v[96:99]
    ds_write_b128 v3, v[100:103] offset:16
    s_waitcnt lgkmcnt(0)
    s_barrier
    v_cmp_gt_u32 vcc, 64, v0
    s_and_saveexec_b64 s[28:29], vcc
    s_cbranch_execz Lk0_end
    v_lshlrev_b32 v3, 2, v0
    """)
    for ks in range(32):
        a(f"ds_read_b32 v{32+ks}, v3 offset:{ks*256}")
    a("s_waitcnt lgkmcnt(0)")
    for ks in range(1, 32):
        a(f"v_add_f32 v32, v32, v{32+ks}")
    round_bf16(a, 32, 32)
    a("""
    s_lshl_b32 s25, s2, 8
    buffer_store_dword v32, v3, s[20:23], s25 offen
    """)
    a.label("Lk0_end")
    a("s_endpgm")
    return kernel_desc("mod_kernel", 104)

def ln_mod(a, x0, tmp, sc0, sh0, out0):
    t0, t1, t2, t3 = tmp, tmp + 1, tmp + 2, tmp + 3
    a(f"v_add_f32 v{t0}, v{x0}, v{x0+1}")
    for j in range(2, 8):
        a(f"v_add_f32 v{t0}, v{t0}, v{x0+j}")
    wave_allreduce(a, t0, t1, t2)
    a(f"v_mul_f32 v{t0}, 0x3b000000, v{t0}")
    a(f"v_sub_f32 v{t1}, v{x0}, v{t0}")
    a(f"v_mul_f32 v{t3}, v{t1}, v{t1}")
    for j in range(1, 8):
        a(f"v_sub_f32 v{t1}, v{x0+j}, v{t0}")
        a(f"v_fmac_f32 v{t3}, v{t1}, v{t1}")
    wave_allreduce(a, t3, t1, t2)
    a(f"v_mul_f32 v{t3}, 0x3b000000, v{t3}")
    round_bf16(a, t0, t0)
    round_bf16(a, t3, t3)
    a(f"v_add_f32 v{t3}, 0x3727c5ac, v{t3}")
    round_bf16(a, t3, t3)
    a(f"v_sqrt_f32 v{t3}, v{t3}")
    a("s_nop 0")
    round_bf16(a, t3, t3)
    a(f"v_rcp_f32 v{t3}, v{t3}")
    a("s_nop 0")
    for j in range(8):
        o = out0 + j
        a(f"v_sub_f32 v{o}, v{x0+j}, v{t0}")
        round_bf16(a, o, o)
        a(f"v_mul_f32 v{o}, v{o}, v{t3}")
        round_bf16(a, o, o)
        a(f"v_add_f32 v{t1}, 1.0, v{sc0+j}")
        round_bf16(a, t1, t1)
        a(f"v_mul_f32 v{o}, v{o}, v{t1}")
        round_bf16(a, o, o)
        a(f"v_add_f32 v{o}, v{o}, v{sh0+j}")
        round_bf16(a, o, o)

def gen_k1(a):
    kernel_begin(a, "h1_kernel")
    a("""
    s_cmp_ge_u32 s2, 512
    s_cbranch_scc1 Lk1_end
    s_load_dwordx2 s[4:5], s[0:1], 0
    s_load_dwordx2 s[8:9], s[0:1], 112
    v_and_b32 v1, 63, v0
    v_lshrrev_b32 v2, 6, v0
    s_lshl_b32 s24, s2, 2
    v_add_u32 v2, s24, v2            ; row
    v_lshlrev_b32 v3, 10, v2
    v_lshlrev_b32 v4, 4, v1
    v_add_u32 v3, v3, v4
    v_lshlrev_b32 v5, 5, v1
    s_waitcnt lgkmcnt(0)
    """)
    srd(a, 12, 4, 2048 * 512 * 2)
    srd(a, 16, 8, 3072 * 4, WS_MOD)
    srd(a, 20, 8, 2048 * 512 * 2, WS_H1F)
    a("""
    buffer_load_dwordx4 v[8:11], v3, s[12:15], 0 offen
    buffer_load_dwordx4 v[16:19], v5, s[16:19], 0 offen
    buffer_load_dwordx4 v[20:23], v5, s[16:19], 0 offen offset:16
    buffer_load_dwordx4 v[24:27], v5, s[16:19], 0 offen offset:2048
    buffer_load_dwordx4 v[28:31], v5, s[16:19], 0 offen offset:2064
    v_lshrrev_b32 v6, 5, v2
    v_lshlrev_b32 v6, 15, v6
    v_lshrrev_b32 v7, 1, v1
    v_lshlrev_b32 v7, 10, v7
    v_add_u32 v6, v6, v7
    v_and_b32 v7, 31, v2
    v_lshlrev_b32 v7, 4, v7
    v_add_u32 v6, v6, v7
    v_and_b32 v7, 1, v1
    v_lshlrev_b32 v7, 9, v7
    v_add_u32 v6, v6, v7
    s_waitcnt vmcnt(0)
    """)
    for j in range(4):
        unpack_bf16(a, 32 + 2 * j, 33 + 2 * j, 8 + j)
    ln_mod(a, 32, 12, 24, 16, 40)
    for j in range(4):
        a(f"v_cvt_pk_bf16_f32 v{48+j}, v{40+2*j}, v{41+2*j}")
    a("buffer_store_dwordx4 v[48:51], v6, s[20:23], 0 offen")
    a.label("Lk1_end")
    a("s_endpgm")
    return kernel_desc("h1_kernel", 56)
```

```python
class Asm:
    def __init__(self):
        self.lines = []
        self.uid = 0
    def __call__(self, s):
        for l in s.strip("\n").split("\n"):
            l = l.strip()
            self.lines.append(l if l.endswith(":") else "    " + l)
    def label(self, name):
        self.lines.append(name + ":")
    def newlabel(self, base):
        self.uid += 1
        return f"L{base}_{self.uid}"
    def raw(self, s):
        self.lines.append(s)
    def text(self):
        return "\n".join(self.lines) + "\n"

def kernel_begin(a, name):
    a.raw(f".globl {name}")
    a.raw(".p2align 8")
    a.raw(f".type {name},@function")
    a.raw(f"{name}:")

def kernel_desc(name, vgpr, sgpr=96, accum=None):
    if accum is None:
        accum = (vgpr + 3) // 4 * 4
    return f""".p2align 6
.amdhsa_kernel {name}
  .amdhsa_next_free_vgpr {vgpr}
  .amdhsa_next_free_sgpr {sgpr}
  .amdhsa_accum_offset {accum}
  .amdhsa_group_segment_fixed_size 0
  .amdhsa_kernarg_size 120
  .amdhsa_user_sgpr_count 2
  .amdhsa_user_sgpr_kernarg_segment_ptr 1
  .amdhsa_system_sgpr_workgroup_id_x 1
.end_amdhsa_kernel
"""

def srd(a, d, base, nbytes, add=0):
    if add:
        a(f"s_add_u32 s{d}, s{base}, {add:#x}")
        a(f"s_addc_u32 s{d+1}, s{base+1}, 0")
    else:
        a(f"s_mov_b32 s{d}, s{base}")
        a(f"s_mov_b32 s{d+1}, s{base+1}")
    a(f"s_mov_b32 s{d+2}, {nbytes:#x}")
    a(f"s_mov_b32 s{d+3}, 0x00020000")

def wave_allreduce(a, v, t1, t2, op="v_add_f32"):
    for dpp in ["quad_perm:[1,0,3,2]", "quad_perm:[2,3,0,1]", "row_half_mirror", "row_mirror"]:
        a("s_nop 1")
        a(f"{op}_dpp v{v}, v{v}, v{v} {dpp} row_mask:0xf bank_mask:0xf")
    for sw in ["v_permlane16_swap_b32", "v_permlane32_swap_b32"]:
        a(f"v_mov_b32 v{t1}, v{v}")
        a(f"v_mov_b32 v{t2}, v{v}")
        a("s_nop 1")
        a(f"{sw} v{t1}, v{t2}")
        a("s_nop 1")
        a(f"{op} v{v}, v{t1}, v{t2}")

def round_bf16(a, dst, src):
    a(f"v_cvt_pk_bf16_f32 v{dst}, 0, v{src}")

def unpack_bf16(a, lo, hi, src):
    a(f"v_lshlrev_b32 v{lo}, 16, v{src}")
    a(f"v_and_b32 v{hi}, 0xffff0000, v{src}")
```

```python
import sys
from genlib import *
from gen_small import *
from gen_attn import *

HEADER = open("adaLN_cond__mha_block_cached__moe_arch_mod__prompt.s.ref").read().split("; Override launch")[0]

def build(kernels):
    a = Asm()
    descs = []
    launches = []
    for (fn, name, grid, block, lds) in kernels:
        launches.append(f"; @launch kernel={name} grid=({grid},1,1) block=({block},1,1) lds={lds}")
    out = HEADER + "\n".join(launches) + "\n"
    out += '.amdgcn_target "amdgcn-amd-amdhsa--gfx950"\n.text\n'
    for (fn, name, grid, block, lds) in kernels:
        descs.append(fn(a))
    out += a.text()
    out += '.section .rodata,"a"\n' + "".join(descs)
    return out

if __name__ == "__main__":
    ks = [(gen_k0, "mod_kernel", 48, 256, 8192),
          (gen_k1, "h1_kernel", 512, 256, 0),
          (gen_k2, "attn_kernel", 256, 512, 131072)]
    try:
        from gen_rest import rest_kernels
        ks += rest_kernels()
    except ImportError as e:
        print("no rest", e)
    open(sys.argv[1] if len(sys.argv) > 1 else "k.s", "w").write(build(ks))
```

```python
from genlib import *
from gen_small import *
import struct, os
XF = set(os.environ.get('XF', '').split(','))

def f32hex(x):
    return struct.unpack("<I", struct.pack("<f", x))[0]

SCALE_C = (128 ** -0.5) * 1.4426950408889634
THR = 5.5 if 'novalu' not in XF else 1e30

V_KA = 1
V_VA = 9
V_KDMA = 13
V_VDMA = 14
V_MTHR = 15
V_NMC = 16
V_F = 17
V_L = 18
V_M = 143
V_MX = 141
USE_PK = False
V_T = 20
V_RING = 24
NRING = 8
V_P = 56
V_S = [72, 104]
V_PA = 136
V_WDMA = 140
V_HOFF = 141
V_LANE16 = 142
V_HX = 144
A_Q = 0
A_O = 32
NVGPR = 160
NAGPR = 96

KSLOT = [i * 16384 for i in range(4)]
VSLOT = [65536 + i * 16384 for i in range(4)]

S_HEAD = 3; S_QB = 4; S_W = 5; S_W1K = 6
S_SRDK = 8; S_SRDV = 12; S_SRDW = 16; S_SRDH = 20; S_SRDO = 24
S_KOFF = 28; S_VOFF = 29; S_T0 = 30; S_T1 = 31; S_CNT = 32; S_C = 33; S_T2 = 34; S_SCALE = 46; S_L2E = 44; S_FLAG = 35

def ring(g):
    b = V_RING + 4 * (g % NRING)
    return b

def dma(a, srdreg, voff, soff_sgpr, extra, ldsaddr):
    a(f"s_add_u32 m0, s{S_W1K}, {ldsaddr}")
    if extra:
        a(f"s_add_u32 s{S_T0}, s{soff_sgpr}, {extra}")
        so = S_T0
    else:
        a("s_nop 0")
        so = soff_sgpr
    a(f"buffer_load_dwordx4 v{voff}, s[{srdreg}:{srdreg+3}], s{so} offen lds")

def dma_k(a, slot):
    dma(a, S_SRDK, V_KDMA, S_KOFF, 0, KSLOT[slot])
    dma(a, S_SRDK, V_KDMA, S_KOFF, 8192, KSLOT[slot] + 8192)
    a(f"s_add_u32 s{S_KOFF}, s{S_KOFF}, 16384")

def dma_v(a, slot):
    dma(a, S_SRDV, V_VDMA, S_VOFF, 0, VSLOT[slot])
    dma(a, S_SRDV, V_VDMA, S_VOFF, 8192, VSLOT[slot] + 8192)
    a(f"s_add_u32 s{S_VOFF}, s{S_VOFF}, 16384")

class Stream:
    pass

def kread(g, slot, kb, ks):
    if 'nolds' in XF: return []
    if 'halflds' in XF and (g & 1): return []
    b = ring(g)
    return [f"ds_read_b128 v[{b}:{b+3}], v{V_KA+ks} offset:{KSLOT[slot] + kb*8192}"]

def vread(g, slot, s, t):
    if 'nolds' in XF: return []
    if 'halflds' in XF and (g & 1): return []
    b = ring(g)
    off = VSLOT[slot] - 65536 + s * 4096
    return [f"ds_read_b64_tr_b16 v[{b}:{b+1}], v{V_VA+t} offset:{off}",
            f"ds_read_b64_tr_b16 v[{b+2}:{b+3}], v{V_VA+t} offset:{off+2048}"]

def wread(g, ldsbase, s, t):
    b = ring(g)
    off = ldsbase + s * 4096
    ar = V_PA + t
    if off >= 65536:
        off -= 65536; ar = 15 + t
    return [f"ds_read_b64_tr_b16 v[{b}:{b+1}], v{ar} offset:{off}",
            f"ds_read_b64_tr_b16 v[{b+2}:{b+3}], v{ar} offset:{off+1024}"]

def hfrag(ks):
    if ks < 16: return f"a[{A_O+4*ks}:{A_O+4*ks+3}]"
    if ks < 24: return f"a[{A_Q+4*(ks-16)}:{A_Q+4*(ks-16)+3}]"
    if ks < 28: return f"v[{V_P+4*(ks-24)}:{V_P+4*(ks-24)+3}]"
    return f"v[{V_HX+4*(ks-28)}:{V_HX+4*(ks-28)+3}]"

def emit_seq(a, items, pre_issued, fillers, tail_reads):
    D = NRING
    allreads = [r for (_, r) in items] + tail_reads
    n = len(items)
    issued = pre_issued
    while issued < min(D, len(allreads)):
        for r in allreads[issued]: a(r)
        issued += 1
    for i in range(n):
        cnt = sum(len(allreads[k]) for k in range(i + 1, issued))
        if 'nowait' not in XF: a(f"s_waitcnt lgkmcnt({cnt})")
        if 'm16' in XF and 'v_mfma_f32_32x32x16' in items[i][0]:
            import re
            m = re.match(r"v_mfma_f32_32x32x16_bf16 ([av])\[(\d+):\d+\], (\S+), (\S+), (.*)", items[i][0])
            ty, d0, A, B, C = m.group(1), int(m.group(2)), m.group(3), m.group(4), m.group(5)
            for h in range(2):
                dd = d0 + 4 * h
                cc = "0" if C == "0" else f"{ty}[{dd}:{dd+3}]"
                a(f"v_mfma_f32_16x16x32_bf16 {ty}[{dd}:{dd+3}], {A} {B} {cc}")
        else:
            a(items[i][0])
        if issued < len(allreads) and issued == i + D:
            for r in allreads[issued]: a(r)
            issued += 1
        for f in fillers.get(i, []):
            a(f)
    return issued - n

def gen_k2(a):
    kernel_begin(a, "attn_kernel")
    a(f"""
    s_cmp_ge_u32 s2, 256
    s_cbranch_scc1 Lk2_end
    s_load_dwordx2 s[36:37], s[0:1], 8      ; K
    s_load_dwordx2 s[38:39], s[0:1], 16     ; V
    s_load_dwordx2 s[40:41], s[0:1], 24     ; wq
    s_load_dwordx2 s[42:43], s[0:1], 112    ; ws
    s_and_b32 s{S_HEAD}, s2, 7
    s_lshr_b32 s{S_T0}, s2, 6
    s_lshl_b32 s{S_T0}, s{S_T0}, 3
    s_or_b32 s{S_HEAD}, s{S_HEAD}, s{S_T0}
    s_lshr_b32 s{S_QB}, s2, 3
    s_and_b32 s{S_QB}, s{S_QB}, 7
    v_lshrrev_b32 v1, 6, v0
    s_nop 0
    v_readfirstlane_b32 s{S_W}, v1
    v_and_b32 v0, 63, v0
    s_lshl_b32 s{S_W1K}, s{S_W}, 10
    s_mov_b32 s{S_C}, {f32hex(SCALE_C):#x}
    s_mov_b32 s{S_SCALE}, {f32hex(128 ** -0.5):#x}
    s_mov_b32 s{S_L2E}, {f32hex(1.4426950408889634):#x}
    """)
    if 'stamp' in XF:
        a("s_memtime s[48:49]")
    if 'stamp' in XF: a("s_memrealtime s[60:61]")
    a(f"""
    v_lshlrev_b32 v{V_LANE16}, 4, v0
    v_lshrrev_b32 v20, 4, v0            ; i>>4 (0..3)
    v_and_b32 v21, 15, v0               ; i&15
    s_lshl_b32 s{S_T0}, s{S_W}, 2
    v_add_u32 v22, s{S_T0}, v20
    v_and_b32 v22, 15, v22
    v_xor_b32 v22, v22, v21
    v_lshlrev_b32 v22, 4, v22
    v_lshlrev_b32 v23, 8, v20
    v_add_u32 v22, v22, v23
    v_add_u32 v{V_KDMA}, s{S_W1K}, v22
    v_lshlrev_b32 v22, 2, v20
    v_xor_b32 v22, v22, v21
    v_lshlrev_b32 v22, 4, v22
    v_add_u32 v{V_VDMA}, v22, v23
    v_add_u32 v{V_VDMA}, s{S_W1K}, v{V_VDMA}
    v_lshlrev_b32 v23, 13, v20
    v_add_u32 v{V_WDMA}, v22, v23
    s_lshl_b32 s{S_T0}, s{S_W}, 15
    v_add_u32 v{V_WDMA}, s{S_T0}, v{V_WDMA}
    v_and_b32 v20, 31, v0
    v_lshlrev_b32 v20, 8, v20
    v_lshrrev_b32 v22, 5, v0
    v_xor_b32 v23, v22, v21
    v_lshlrev_b32 v23, 4, v23
    v_add_u32 v{V_KA}, v20, v23
    """)
    for ks in range(1, 8):
        a(f"v_xor_b32 v{V_KA+ks}, {ks*32}, v{V_KA}")
    a(f"""
    v_lshrrev_b32 v20, 2, v21           ; r
    v_lshrrev_b32 v23, 4, v0
    v_and_b32 v23, 1, v23
    v_lshlrev_b32 v23, 5, v23           ; 32g
    v_and_b32 v21, 3, v0
    v_lshlrev_b32 v21, 3, v21           ; 8c
    v_add_u32 v21, v21, v23             ; 32g+8c
    v_lshlrev_b32 v23, 8, v20           ; r*256
    v_add_u32 v21, v21, v23             ; r*256+32g+8c
    v_lshlrev_b32 v23, 10, v22          ; u*1024
    """)
    for t in range(4):
        a(f"v_xor_b32 v{V_VA+t}, {t}, v20")
        a(f"v_lshlrev_b32 v{V_VA+t}, 6, v{V_VA+t}")
        a(f"v_add_u32 v{V_VA+t}, v{V_VA+t}, v21")
        a(f"v_add_u32 v{V_VA+t}, v{V_VA+t}, v23")
        a(f"v_add_u32 v{V_PA+t}, v{V_VA+t}, v23")
        a(f"v_add_u32 v{V_VA+t}, 0x10000, v{V_VA+t}")
        a(f"v_add_u32 v{15+t}, 0x10000, v{V_PA+t}")
    a("s_waitcnt lgkmcnt(0)")
    a(f"""
    s_lshl_b32 s{S_T0}, s{S_HEAD}, 19
    s_add_u32 s{S_SRDK}, s36, s{S_T0}
    s_addc_u32 s{S_SRDK+1}, s37, 0
    s_mov_b32 s{S_SRDK+2}, 0x80000
    s_mov_b32 s{S_SRDK+3}, 0x00020000
    s_add_u32 s{S_SRDV}, s38, s{S_T0}
    s_addc_u32 s{S_SRDV+1}, s39, 0
    s_mov_b32 s{S_SRDV+2}, 0x80000
    s_mov_b32 s{S_SRDV+3}, 0x00020000
    s_lshl_b32 s{S_T0}, s{S_HEAD}, 8
    s_add_u32 s{S_SRDW}, s40, s{S_T0}
    s_addc_u32 s{S_SRDW+1}, s41, 0
    s_sub_u32 s{S_SRDW+2}, 0x400000, s{S_T0}
    s_mov_b32 s{S_SRDW+3}, 0x00020000
    """)
    srd(a, S_SRDH, 42, 2048 * 512 * 2, WS_H1F)
    srd(a, S_SRDO, 42, 2048 * 4096 * 2, WS_OF)
    wslot = [KSLOT[0], KSLOT[1], KSLOT[2], VSLOT[0], VSLOT[1], KSLOT[3], VSLOT[2], VSLOT[3]]
    a(f"s_mov_b32 s{S_T1}, 0")
    def dma_w(c):
        dma(a, S_SRDW, V_WDMA, S_T1, 0, wslot[c])
        dma(a, S_SRDW, V_WDMA, S_T1, 262144, wslot[c] + 8192)
        a(f"s_add_u32 s{S_T1}, s{S_T1}, 524288")
    for c in range(4): dma_w(c)
    a(f"""
    s_lshl_b32 s{S_T2}, s{S_QB}, 3
    s_add_u32 s{S_T2}, s{S_T2}, s{S_W}
    s_lshl_b32 s{S_T2}, s{S_T2}, 15
    """)
    for ks in range(32):
        a(f"buffer_load_dwordx4 {hfrag(ks)}, v{V_LANE16}, s[{S_SRDH}:{S_SRDH+3}], s{S_T2} offen offset:{(ks%4)*1024}")
        if ks % 4 == 3 and ks < 31:
            a(f"s_add_u32 s{S_T2}, s{S_T2}, 4096")
    for c in range(4, 8): dma_w(c)
    a(f"s_mov_b32 s{S_KOFF}, 0")
    a(f"s_mov_b32 s{S_VOFF}, 0")
    a("s_waitcnt vmcnt(8)")
    a("s_barrier")
    if 'stamp' in XF:
        a("s_memtime s[50:51]")
    g = 0
    for grp in range(2):
        items = []
        for c in range(4 * grp, 4 * grp + 4):
            for s in range(4):
                for t in range(4):
                    d = V_S[0] + 16 * t
                    first = (c == 0 and s == 0)
                    csrc = "0" if first else f"v[{d}:{d+15}]"
                    b = ring(g)
                    items.append((f"v_mfma_f32_32x32x16_bf16 v[{d}:{d+15}], v[{b}:{b+3}], {hfrag(4*c+s)}, {csrc}",
                                  wread(g, wslot[c], s, t)))
                    g += 1
        fill = {}
        if grp == 1:
            pass
        emit_seq(a, items, 0, fill, [])
        if grp == 0:
            a("s_waitcnt vmcnt(0)")
            a("s_barrier")
            dma_k(a, 0); dma_k(a, 1); dma_k(a, 2); dma_v(a, 0)
    if 'stamp' in XF:
        a("s_memtime s[52:53]")
    a("s_nop 15")
    for t in range(4):
        for hh in range(2):
            base = V_S[0] + 16 * t + 8 * hh
            a(f"v_cvt_pk_bf16_f32 v20, v{base}, v{base+1}")
            a(f"v_cvt_pk_bf16_f32 v21, v{base+2}, v{base+3}")
            a(f"v_cvt_pk_bf16_f32 v22, v{base+4}, v{base+5}")
            a(f"v_cvt_pk_bf16_f32 v23, v{base+6}, v{base+7}")
            a("s_nop 1")
            a("v_permlane32_swap_b32 v20, v22")
            a("v_permlane32_swap_b32 v21, v23")
            a("s_nop 1")
            ks = 2 * t + hh
            for x in range(4):
                a(f"v_accvgpr_write_b32 a{A_Q+4*ks+x}, v{20+x}")
    for i in range(64):
        a(f"v_accvgpr_write_b32 a{A_O+i}, 0")
    a(f"""
    v_mov_b32 v{V_M}, 0xff800000
    v_mov_b32 v{V_MTHR}, 0xff800000
    v_mov_b32 v{V_L}, 0
    v_mov_b32 v{V_L+1}, 0
    v_mov_b32 v{V_NMC}, 0
    s_waitcnt vmcnt(0)
    s_barrier
    """)
    dma_v(a, 1); dma_k(a, 3); dma_v(a, 2)

    gctr = [0]
    def qk_items(tile, sdst):
        items = []
        for kb in range(2):
            for ks in range(8):
                d = V_S[sdst] + 16 * kb
                csrc = "0" if ks == 0 else f"v[{d}:{d+15}]"
                gg = gctr[0]; gctr[0] += 1
                b = ring(gg)
                items.append((f"v_mfma_f32_32x32x16_bf16 v[{d}:{d+15}], v[{b}:{b+3}], a[{A_Q+4*ks}:{A_Q+4*ks+3}], {csrc}",
                              kread(gg, tile % 4, kb, ks)))
        return items
    def pv_items(tile):
        items = []
        for s in range(4):
            for t in range(4):
                d = A_O + 16 * t
                gg = gctr[0]; gctr[0] += 1
                b = ring(gg)
                items.append((f"v_mfma_f32_32x32x16_bf16 a[{d}:{d+15}], v[{b}:{b+3}], v[{V_P+4*s}:{V_P+4*s+3}], a[{d}:{d+15}]",
                              vread(gg, tile % 4, s, t)))
        return items
    def peek_k_reads(tile):
        save = gctr[0]
        it = qk_items(tile, 0)
        gctr[0] = save
        return [r for (_, r) in it[:NRING]]

    def prep_ops(sreg, pairs):
        b = V_S[sreg]
        ops = []
        n = len(pairs)
        for k in range(n + 3):
            if k < n:
                i = pairs[k]
                ops.append((f"v_cvt_pk_bf16_f32 v{b+2*i}, 0, v{b+2*i}", 1))
                ops.append((f"v_cvt_pk_bf16_f32 v{b+2*i+1}, 0, v{b+2*i+1}", 1))
            if 0 <= k - 1 < n:
                i = pairs[k - 1]
                if USE_PK:
                    ops.append((f"v_pk_mul_f32 v[{b+2*i}:{b+2*i+1}], v[{b+2*i}:{b+2*i+1}], s[{S_SCALE}:{S_SCALE+1}] op_sel_hi:[1,0]", 1))
                else:
                    ops.append((f"v_mul_f32 v{b+2*i}, s{S_SCALE}, v{b+2*i}", 1))
                    ops.append((f"v_mul_f32 v{b+2*i+1}, s{S_SCALE}, v{b+2*i+1}", 1))
            if 0 <= k - 2 < n:
                i = pairs[k - 2]
                ops.append((f"v_cvt_pk_bf16_f32 v{b+2*i}, 0, v{b+2*i}", 1))
                ops.append((f"v_cvt_pk_bf16_f32 v{b+2*i+1}, 0, v{b+2*i+1}", 1))
            if 0 <= k - 3 < n:
                i = pairs[k - 3]
                if i == 0:
                    ops.append((f"v_max_f32 v{V_MX}, v{b}, v{b+1}", 1))
                else:
                    ops.append((f"v_max3_f32 v{V_MX}, v{V_MX}, v{b+2*i}, v{b+2*i+1}", 1))
        return ops

    def post_ops(sreg):
        b = V_S[sreg]
        ops = []
        for k in range(16 + 2):
            if k < 16:
                i = k
                if USE_PK:
                    ops.append((f"v_pk_fma_f32 v[{b+2*i}:{b+2*i+1}], v[{b+2*i}:{b+2*i+1}], s[{S_L2E}:{S_L2E+1}], v[{V_NMC}:{V_NMC+1}] op_sel_hi:[1,0,0]", 1))
                else:
                    ops.append((f"v_fma_f32 v{b+2*i}, v{b+2*i}, s{S_L2E}, v{V_NMC}", 1))
                    ops.append((f"v_fma_f32 v{b+2*i+1}, v{b+2*i+1}, s{S_L2E}, v{V_NMC}", 1))
            if 0 <= k - 1 < 16:
                i = k - 1
                ops.append((f"v_exp_f32 v{b+2*i}, v{b+2*i}", 2))
                ops.append((f"v_exp_f32 v{b+2*i+1}, v{b+2*i+1}", 2))
            if 0 <= k - 2 < 16:
                i = k - 2
                if USE_PK:
                    ops.append((f"v_pk_add_f32 v[{V_L}:{V_L+1}], v[{V_L}:{V_L+1}], v[{b+2*i}:{b+2*i+1}]", 1))
                else:
                    ops.append((f"v_add_f32 v{V_L}, v{V_L}, v{b+2*i}", 1))
                    ops.append((f"v_add_f32 v{V_L+1}, v{V_L+1}, v{b+2*i+1}", 1))
                ops.append((f"v_cvt_pk_bf16_f32 v{V_P+i}, v{b+2*i}, v{b+2*i+1}", 1))
        return ops

    def spread(ops, nslots):
        if 'novalu' in XF: ops = [(t, w) for (t, w) in ops if 'v_max' in t]
        if 'noexp' in XF: ops = [(t.replace('v_exp_f32', 'v_mov_b32'), w) for (t, w) in ops]
        if 'nocvt' in XF: ops = [(t, w) for (t, w) in ops if not ('v_cvt_pk' in t and ', 0, ' in t)]
        tot = sum(w for _, w in ops)
        out = [[] for _ in range(nslots)]
        acc = 0
        for t, w in ops:
            k = min(nslots - 1, int((acc + w / 2) * nslots / tot))
            out[k].append(t)
            acc += w
        return out

    NPOST_B = 6
    PREP0 = 10

    def rare1(lbl_rare, lbl_back):
        r = [f"{lbl_rare}:"]
        body = f"""
        v_max_f32 v{V_MX}, v{V_MX}, v{V_M}
        v_mov_b32 v20, v{V_MX}
        v_mov_b32 v21, v{V_MX}
        s_nop 1
        v_permlane32_swap_b32 v20, v21
        s_nop 1
        v_max_f32 v{V_MX}, v20, v21
        v_sub_f32 v20, v{V_M}, v{V_MX}
        v_mul_f32 v20, s{S_L2E}, v20
        v_exp_f32 v{V_F}, v20
        v_mov_b32 v{V_M}, v{V_MX}
        v_mul_f32 v{V_NMC}, s{S_L2E}, v{V_MX}
        v_sub_f32 v{V_NMC}, 0, v{V_NMC}
        v_add_f32 v{V_MTHR}, {f32hex(THR):#x}, v{V_MX}
        v_mul_f32 v{V_L}, v{V_L}, v{V_F}
        v_mul_f32 v{V_L+1}, v{V_L+1}, v{V_F}
        s_mov_b32 s{S_FLAG}, 1
        s_branch {lbl_back}
        """
        r += ["    " + l.strip() for l in body.strip().split("\n")]
        return r
    def rare2(lbl_rare, lbl_back):
        r = [f"{lbl_rare}:", "    s_nop 15"]
        for i in range(64):
            r.append(f"    v_accvgpr_read_b32 v21, a{A_O+i}")
            r.append(f"    v_mul_f32 v21, v21, v{V_F}")
            r.append(f"    v_accvgpr_write_b32 a{A_O+i}, v21")
        r.append(f"    s_mov_b32 s{S_FLAG}, 0")
        r.append("    s_nop 1")
        r.append(f"    s_branch {lbl_back}")
        return r

    rare_blocks = []
    def check1():
        lr = a.newlabel("rareA"); lb = a.newlabel("backA")
        rare_blocks.extend(rare1(lr, lb))
        return [f"v_cmp_gt_f32 vcc, v{V_MX}, v{V_MTHR}", f"s_cbranch_vccnz {lr}", f"{lb}:"]
    def check2():
        lr = a.newlabel("rareB"); lb = a.newlabel("backB")
        rare_blocks.extend(rare2(lr, lb))
        return [f"s_cmp_lg_u32 s{S_FLAG}, 0", f"s_cbranch_scc1 {lr}", f"{lb}:"]

    a(f"s_mov_b32 s{S_FLAG}, 0")
    items = qk_items(0, 0)
    pre = emit_seq(a, items, 0, {}, peek_k_reads(1))
    a("s_nop 15")
    for t, w in prep_ops(0, list(range(16))): a(t)
    for t in check1(): a(t)
    for t in check2(): a(t)
    for gl in spread(post_ops(0), 16)[:NPOST_B]:
        for t in gl: a(t)

    def iteration(j, pre, last=False, vm=4, do_k=True, do_v=True):
        scur = j & 1; snxt = 1 - scur
        a(f"s_waitcnt vmcnt({vm})")
        if 'nobar' not in XF: a("s_barrier")
        if 'nodma' in XF: do_k = do_v = False
        postc = spread(post_ops(scur), 16)[NPOST_B:]
        if not last:
            fill = {i: [] for i in range(32)}
            for k, gl in enumerate(postc): fill[k] += gl
            nprep = 32 - NPOST_B - PREP0
            p0 = spread(prep_ops(snxt, list(range(8))), nprep // 2)
            p1 = spread(prep_ops(snxt, list(range(8, 16))), nprep - nprep // 2)
            for k, gl in enumerate(p0 + p1): fill[PREP0 + k] += gl
            fill[32 - NPOST_B - 1] += check1()
            for k, gl in enumerate(spread(post_ops(snxt), 16)[:NPOST_B]): fill[32 - NPOST_B + k] += gl
            fill[31] += check2()
            a2 = Asm()
            if do_k: dma_k(a2, j % 4)
            fill[1] = fill[1] + [l.strip() for l in a2.lines]
            a2 = Asm()
            if do_v: dma_v(a2, (j + 3) % 4)
            fill[6] = fill[6] + [l.strip() for l in a2.lines]
            def prio(lo, hi):
                l1 = a.newlabel("pr"); l2 = a.newlabel("pr")
                return [f"s_cmp_lt_u32 s{S_W}, 4", f"s_cbranch_scc0 {l1}", f"s_setprio {lo}", f"s_branch {l2}", f"{l1}:", f"s_setprio {hi}", f"{l2}:"]
            if 'prio1' in XF:
                fill[0] = prio(2, 1) + fill[0]
                fill[15] = fill[15] + prio(0, 1)
            if 'prio2' in XF:
                fill[0] = prio(2, 1) + fill[0]
                fill[7] = fill[7] + prio(0, 1)
                fill[15] = fill[15] + prio(2, 1)
                fill[23] = fill[23] + prio(0, 1)
            if 'prio3' in XF:
                fill[0] = prio(2, 1) + fill[0]
                fill[10] = fill[10] + prio(0, 1)
            if 'prio4' in XF:
                fill[0] = prio(1, 0) + fill[0]
                fill[7] = fill[7] + prio(0, 1)
                fill[15] = fill[15] + prio(1, 0)
                fill[23] = fill[23] + prio(0, 1)
            itemsA = qk_items(j + 1, snxt)
            itemsB = pv_items(j)
            nxt = peek_k_reads(j + 2) if not iteration.no_next else []
            pre = emit_seq(a, itemsA + itemsB, pre, fill, nxt)
        else:
            for gl in postc:
                for t in gl: a(t)
            itemsB = pv_items(j)
            a("s_nop 1")
            pre = emit_seq(a, itemsB, 0, {}, [])
        return pre
    iteration.no_next = False

    a(f"s_mov_b32 s{S_CNT}, {1 if 'loop1' in XF else 7}")
    if 'stamp' in XF:
        a("s_memtime s[54:55]")
    a.label("Lk2_loop")
    g_at_loop = gctr[0]
    assert g_at_loop % NRING == 0
    p = pre
    for jj in range(4):
        p = iteration(jj, p)
    assert p == pre, (p, pre)
    assert gctr[0] % NRING == 0
    a(f"s_sub_u32 s{S_CNT}, s{S_CNT}, 1")
    a(f"s_cmp_lg_u32 s{S_CNT}, 0")
    a("s_cbranch_scc1 Lk2_loop")
    p = iteration(28, p, vm=4, do_k=False, do_v=True)
    p = iteration(29, p, vm=2, do_k=False, do_v=False)
    iteration.no_next = True
    p = iteration(30, p, vm=0, do_k=False, do_v=False)
    p = iteration(31, p, last=True, vm=0)
    a(f"v_add_f32 v{V_L}, v{V_L}, v{V_L+1}")
    if 'stamp' in XF:
        a("s_memtime s[56:57]")
    a(f"""
    v_mov_b32 v20, v{V_L}
    v_mov_b32 v21, v{V_L}
    s_nop 1
    v_permlane32_swap_b32 v20, v21
    s_nop 1
    v_add_f32 v20, v20, v21
    v_rcp_f32 v20, v20
    s_lshl_b32 s{S_T2}, s{S_QB}, 3
    s_add_u32 s{S_T2}, s{S_T2}, s{S_W}
    s_lshl_b32 s{S_T2}, s{S_T2}, 18
    s_lshl_b32 s{S_T0}, s{S_HEAD}, 13
    s_add_u32 s{S_T2}, s{S_T2}, s{S_T0}
    s_nop 15
    """)
    for t in range(4):
        for hh in range(2):
            rb = V_S[0] + 8 * (2 * t + hh)
            for x in range(8):
                a(f"v_accvgpr_read_b32 v{rb+x}, a{A_O+16*t+8*hh+x}")
            for x in range(8):
                a(f"v_mul_f32 v{rb+x}, v{rb+x}, v20")
            for x in range(4):
                a(f"v_cvt_pk_bf16_f32 v{rb+x}, v{rb+2*x}, v{rb+2*x+1}")
            k = 2 * t + hh
            if k == 4:
                a(f"s_add_u32 s{S_T2}, s{S_T2}, 4096")
            a(f"buffer_store_dwordx4 v[{rb}:{rb+3}], v{V_LANE16}, s[{S_SRDO}:{S_SRDO+3}], s{S_T2} offen offset:{(k%4)*1024}")
    if 'stamp' in XF:
        a("s_waitcnt vmcnt(0)")
        a("s_memtime s[58:59]")
        a("s_memrealtime s[62:63]")
        a("s_waitcnt lgkmcnt(0)")
        srd(a, 36, 42, 1 << 20, 80 << 20)
        for i in range(16):
            a(f"v_mov_b32 v{24+i}, s{48+i}")
        a(f"""
        s_lshl_b32 s{S_T0}, s2, 3
        s_add_u32 s{S_T0}, s{S_T0}, s{S_W}
        s_lshl_b32 s{S_T0}, s{S_T0}, 6
        v_mov_b32 v20, 0
        s_mov_b64 exec, 1
        buffer_store_dwordx4 v[24:27], v20, s[36:39], s{S_T0} offen
        buffer_store_dwordx4 v[28:31], v20, s[36:39], s{S_T0} offen offset:16
        buffer_store_dwordx4 v[32:35], v20, s[36:39], s{S_T0} offen offset:32
        buffer_store_dwordx4 v[36:39], v20, s[36:39], s{S_T0} offen offset:48
        """)
    a.label("Lk2_end")
    a("s_endpgm")
    for l in rare_blocks: a.raw(l)
    return kernel_desc("attn_kernel", NVGPR + NAGPR, sgpr=80, accum=NVGPR)
```

```python
from genlib import *
from gen_small import *
import os
XF = set(os.environ.get('XF', '').split(','))
WS_KEY = WS_R + 65536

def top8k(a, vlane, srd_k, v0, sidx, skey):
    K = v0; T = v0 + 32; T1 = v0 + 33; T2 = v0 + 34
    a(f"v_lshlrev_b32 v{T}, 7, v{vlane}")
    for i in range(8):
        a(f"buffer_load_dwordx4 v[{K+4*i}:{K+4*i+3}], v{T}, s[{srd_k}:{srd_k+3}], 0 offen offset:{16*i}")
    return K, T, T1, T2

def top8k_compute(a, K, T, T1, T2, sidx, skey):
    for rnd in range(8):
        if rnd == 0:
            a(f"v_max3_u32 v{T}, v{K}, v{K+1}, v{K+2}")
            for i in range(3, 31, 2):
                a(f"v_max3_u32 v{T}, v{T}, v{K+i}, v{K+i+1}")
            a(f"v_max_u32 v{T}, v{T}, v{K+31}")
            wave_allreduce(a, T, T1, T2, op="v_max_u32")
            a("s_nop 0")
            a(f"v_readfirstlane_b32 s{skey}, v{T}")
        else:
            a(f"s_sub_u32 s{sidx+rnd}, s{skey+rnd-1}, 1")
            a(f"v_sub_u32 v{T}, s{sidx+rnd}, v{K}")
            for i in range(1, 31, 2):
                a(f"v_sub_u32 v{T1}, s{sidx+rnd}, v{K+i}")
                a(f"v_sub_u32 v{T2}, s{sidx+rnd}, v{K+i+1}")
                a(f"v_min3_u32 v{T}, v{T}, v{T1}, v{T2}")
            a(f"v_sub_u32 v{T1}, s{sidx+rnd}, v{K+31}")
            a(f"v_min_u32 v{T}, v{T}, v{T1}")
            wave_allreduce(a, T, T1, T2, op="v_min_u32")
            a("s_nop 0")
            a(f"v_readfirstlane_b32 s{skey+rnd}, v{T}")
            a("s_nop 3")
            a(f"s_sub_u32 s{skey+rnd}, s{sidx+rnd}, s{skey+rnd}")
    a("s_nop 3")
    for rnd in range(8):
        a(f"s_and_b32 s{sidx+rnd}, s{skey+rnd}, 0x7ff")
        a(f"s_sub_u32 s{sidx+rnd}, 2047, s{sidx+rnd}")

def sel8(a, vdst, vsel, vtmp, sbase):
    a(f"v_mov_b32 v{vdst}, s{sbase}")
    for t in range(1, 8):
        a(f"v_cmp_eq_u32 vcc, {t}, v{vsel}")
        a(f"v_mov_b32 v{vtmp}, s{sbase+t}")
        a("s_nop 0")
        a(f"v_cndmask_b32 v{vdst}, v{vdst}, v{vtmp}, vcc")

def tr_addr64(a, vdst, vlane, t1, t2):
    a(f"""
    v_lshrrev_b32 v{t1}, 5, v{vlane}
    v_lshlrev_b32 v{t1}, 3, v{t1}
    v_and_b32 v{t2}, 15, v{vlane}
    v_lshrrev_b32 v{t2}, 2, v{t2}
    v_add_u32 v{t1}, v{t1}, v{t2}
    v_lshlrev_b32 v{vdst}, 6, v{t1}
    v_lshrrev_b32 v{t1}, 4, v{vlane}
    v_and_b32 v{t1}, 1, v{t1}
    v_lshlrev_b32 v{t1}, 5, v{t1}
    v_add_u32 v{vdst}, v{vdst}, v{t1}
    v_and_b32 v{t1}, 3, v{vlane}
    v_lshlrev_b32 v{t1}, 3, v{t1}
    v_add_u32 v{vdst}, v{vdst}, v{t1}
    """)

def gen_k5(a):
    kernel_begin(a, "moe1_kernel")
    a("""
    s_cmp_ge_u32 s2, 56
    s_cbranch_scc1 Lk5_end
    s_load_dwordx2 s[4:5], s[0:1], 56     ; w_gate
    s_load_dwordx2 s[6:7], s[0:1], 64     ; w_up
    s_load_dwordx2 s[8:9], s[0:1], 112    ; ws
    v_and_b32 v1, 63, v0
    v_lshrrev_b32 v2, 6, v0
    s_nop 0
    v_readfirstlane_b32 s3, v2            ; wave
    v_lshrrev_b32 v3, 2, v1
    s_mov_b32 s36, 3584
    v_mul_lo_u32 v3, v3, s36
    v_and_b32 v4, 3, v1
    v_lshlrev_b32 v4, 4, v4
    v_add_u32 v3, v3, v4
    s_waitcnt lgkmcnt(0)
    s_lshr_b32 s36, s3, 2
    s_cmp_eq_u32 s36, 0
    s_cselect_b32 s12, s4, s6
    s_cselect_b32 s13, s5, s7
    s_mov_b32 s14, 0x1c0000
    s_mov_b32 s15, 0x00020000
    """)
    srd(a, 20, 8, 2048 * 4, WS_KEY)
    srd(a, 24, 8, 2048 * 512 * 2, WS_H2)
    srd(a, 28, 8, 1792 * 8 * 2, WS_ACT)
    srd(a, 32, 8, 64, WS_IDX)
    srd(a, 60, 8, 2048 * 4, WS_R)
    K, T, T1, T2 = top8k(a, 1, 20, 8, 40, 48)
    a("""
    s_and_b32 s36, s3, 3
    s_mul_i32 s37, s36, 458752            ; 128 rows * 3584
    s_lshl_b32 s38, s2, 6
    s_add_u32 s37, s37, s38
    s_lshl_b32 s38, s3, 13
    """)
    for c in range(8):
        a(f"s_add_u32 m0, s38, {c*1024}")
        a("s_nop 0")
        a("buffer_load_dwordx4 v3, s[12:15], s37 offen lds")
        if c < 7: a("s_add_u32 s37, s37, 57344")
    tr_addr64(a, 5, 1, 6, 7)
    a("v_add_u32 v5, s38, v5")
    a("s_waitcnt vmcnt(8)")
    top8k_compute(a, K, T, T1, T2, 40, 48)
    a("v_and_b32 v6, 7, v1")
    sel8(a, 7, 6, 44, 40)
    a("""
    v_lshlrev_b32 v7, 10, v7
    v_lshrrev_b32 v44, 5, v1
    v_lshlrev_b32 v44, 4, v44
    v_add_u32 v7, v7, v44
    s_lshl_b32 s37, s36, 8
    """)
    for s in range(8):
        a(f"buffer_load_dwordx4 v[{64+4*s}:{67+4*s}], v7, s[24:27], s37 offen offset:{s*32}")
    a("""
    s_add_u32 s39, s2, s3
    s_cmp_lg_u32 s39, 0
    s_cbranch_scc1 Lk5_noidx
    v_cmp_gt_u32 vcc, 8, v1
    s_and_saveexec_b64 s[56:57], vcc
    """)
    sel8(a, 45, 1, 46, 40)
    a(f"""
    v_lshlrev_b32 v46, 2, v45
    buffer_load_dword v47, v46, s[60:63], 0 offen
    v_lshlrev_b32 v46, 2, v1
    buffer_store_dword v45, v46, s[32:35], 0 offen
    s_waitcnt vmcnt(0)
    s_mov_b32 s39, {LOG2E:#x}
    v_mul_f32 v47, s39, v47
    v_exp_f32 v47, -v47
    s_nop 0
    v_add_f32 v47, 1.0, v47
    v_rcp_f32 v47, v47
    s_nop 0
    """)
    round_bf16(a, 47, 47)
    a("buffer_store_dword v47, v46, s[32:35], 0 offen offset:32")
    a("s_mov_b64 exec, -1")
    a.label("Lk5_noidx")
    a("s_waitcnt vmcnt(0)")
    for s in range(8):
        a(f"ds_read_b64_tr_b16 v[{96+4*s}:{97+4*s}], v5 offset:{s*1024}")
        a(f"ds_read_b64_tr_b16 v[{98+4*s}:{99+4*s}], v5 offset:{s*1024+256}")
    for s in range(8):
        a(f"s_waitcnt lgkmcnt({2*(7-s)})")
        c = "0" if s == 0 else "v[8:23]"
        a(f"v_mfma_f32_32x32x16_bf16 v[8:23], v[{96+4*s}:{99+4*s}], v[{64+4*s}:{67+4*s}], {c}")
    a("""
    v_and_b32 v44, 31, v1
    v_lshlrev_b32 v45, 7, v44
    v_lshrrev_b32 v46, 5, v1
    v_lshlrev_b32 v46, 4, v46
    v_add_u32 v45, v45, v46
    s_lshl_b32 s37, s3, 10
    s_add_u32 s37, s37, 65536
    v_add_u32 v45, s37, v45
    v_cmp_gt_u32 vcc, 8, v44
    s_nop 7
    s_nop 3
    s_and_saveexec_b64 s[56:57], vcc
    """)
    for q in range(4):
        a(f"ds_write_b128 v45, v[{8+4*q}:{11+4*q}] offset:{q*32}")
    a("""
    s_mov_b64 exec, -1
    s_waitcnt lgkmcnt(0)
    s_barrier
    v_cmp_gt_u32 vcc, 256, v0
    s_and_saveexec_b64 s[56:57], vcc
    s_cbranch_execz Lk5_end
    v_lshlrev_b32 v44, 2, v0
    v_add_u32 v44, 0x10000, v44
    """)
    for w in range(8):
        a(f"ds_read_b32 v{8+w}, v44 offset:{w*1024}")
    a("""
    s_waitcnt lgkmcnt(0)
    v_add_f32 v8, v8, v9
    v_add_f32 v10, v10, v11
    v_add_f32 v8, v8, v10
    v_add_f32 v12, v12, v13
    v_add_f32 v14, v14, v15
    v_add_f32 v12, v12, v14
    """)
    round_bf16(a, 8, 8)
    round_bf16(a, 12, 12)
    a(f"""
    s_mov_b32 s36, {LOG2E:#x}
    v_mul_f32 v9, s36, v8
    v_exp_f32 v9, -v9
    s_nop 0
    v_add_f32 v9, 1.0, v9
    v_rcp_f32 v9, v9
    s_nop 0
    v_mul_f32 v8, v8, v9
    """)
    round_bf16(a, 8, 8)
    a("""
    v_mul_f32 v8, v8, v12
    v_cvt_pk_bf16_f32 v8, v8, v8
    v_lshrrev_b32 v44, 5, v0
    s_mov_b32 s36, 3584
    v_mul_lo_u32 v44, v44, s36
    v_and_b32 v45, 31, v0
    v_lshlrev_b32 v45, 1, v45
    v_add_u32 v44, v44, v45
    s_lshl_b32 s37, s2, 6
    buffer_store_short v8, v44, s[28:31], s37 offen
    """)
    a.label("Lk5_end")
    a("s_endpgm")
    return kernel_desc("moe1_kernel", 128, sgpr=72)

def gen_k6(a):
    kernel_begin(a, "moe2_kernel")
    a("""
    s_cmp_ge_u32 s2, 16
    s_cbranch_scc1 Lk6_end
    s_load_dwordx2 s[4:5], s[0:1], 72     ; w_down
    s_load_dwordx2 s[8:9], s[0:1], 112    ; ws
    s_load_dwordx2 s[10:11], s[0:1], 96   ; out
    v_and_b32 v1, 63, v0
    v_lshrrev_b32 v2, 6, v0
    s_nop 0
    v_readfirstlane_b32 s3, v2
    v_lshrrev_b32 v3, 2, v1
    v_lshlrev_b32 v3, 10, v3
    v_and_b32 v4, 3, v1
    v_lshlrev_b32 v4, 4, v4
    v_add_u32 v3, v3, v4
    s_waitcnt lgkmcnt(0)
    """)
    srd(a, 12, 4, 1792 * 512 * 2)
    srd(a, 16, 8, 1792 * 8 * 2, WS_ACT)
    srd(a, 20, 8, 64, WS_IDX)
    srd(a, 24, 8, 2048 * 512 * 2, WS_H2)
    srd(a, 28, 8, 2048 * 512 * 2, WS_X2)
    srd(a, 32, 10, 2048 * 512 * 2)
    srd(a, 40, 8, 3072 * 4, WS_MOD)
    a("""
    s_mul_i32 s37, s3, 229376             ; 224 rows * 1024
    s_lshl_b32 s38, s2, 6
    s_add_u32 s37, s37, s38
    s_mul_i32 s38, s3, 14336
    """)
    for c in range(14):
        a(f"s_add_u32 m0, s38, {c*1024}")
        a("s_nop 0")
        if 'k6nodma' not in XF: a("buffer_load_dwordx4 v3, s[12:15], s37 offen lds")
        if c < 13: a("s_add_u32 s37, s37, 16384")
    a("""
    v_and_b32 v6, 7, v1
    s_mov_b32 s36, 3584
    v_mul_lo_u32 v7, v6, s36
    v_lshrrev_b32 v6, 5, v1
    v_lshlrev_b32 v6, 4, v6
    v_add_u32 v7, v7, v6
    s_mul_i32 s37, s3, 448
    """)
    for s in range(14):
        if 'k6nob' not in XF: a(f"buffer_load_dwordx4 v[{64+4*s}:{67+4*s}], v7, s[16:19], s37 offen offset:{s*32}")
    tr_addr64(a, 5, 1, 6, 7)
    a("v_add_u32 v5, s38, v5")
    a("""
    v_lshrrev_b32 v24, 5, v0
    v_and_b32 v24, 7, v24
    v_lshlrev_b32 v25, 2, v24
    buffer_load_dword v26, v25, s[20:23], 0 offen            ; idx
    buffer_load_dword v27, v25, s[20:23], 0 offen offset:32  ; rsel
    v_and_b32 v28, 31, v0
    s_lshl_b32 s37, s2, 5
    v_add_u32 v28, s37, v28
    v_lshlrev_b32 v29, 2, v28
    s_mov_b32 s36, 10240
    buffer_load_dword v30, v29, s[40:43], s36 offen          ; gb
    s_waitcnt vmcnt(2)
    v_lshlrev_b32 v26, 10, v26
    v_lshlrev_b32 v29, 1, v28
    v_add_u32 v26, v26, v29
    buffer_load_ushort v31, v26, s[24:27], 0 offen           ; h2
    buffer_load_ushort v32, v26, s[28:31], 0 offen           ; x2
    """)
    for s in range(14):
        a(f"ds_read_b64_tr_b16 v[{120+4*(s%8)}:{121+4*(s%8)}], v5 offset:{s*1024}")
        a(f"ds_read_b64_tr_b16 v[{122+4*(s%8)}:{123+4*(s%8)}], v5 offset:{s*1024+256}")
        if s == 6 or s == 13:
            lo = 0 if s == 6 else 7
            for s2 in range(lo, s + 1):
                a(f"s_waitcnt lgkmcnt({2*(s-s2)})")
                c = "0" if s2 == 0 else "v[8:23]"
                a(f"v_mfma_f32_32x32x16_bf16 v[8:23], v[{120+4*(s2%8)}:{123+4*(s2%8)}], v[{64+4*s2}:{67+4*s2}], {c}")
    a("""
    v_and_b32 v44, 31, v1
    v_lshlrev_b32 v45, 7, v44
    v_lshrrev_b32 v46, 5, v1
    v_lshlrev_b32 v46, 4, v46
    v_add_u32 v45, v45, v46
    s_lshl_b32 s37, s3, 10
    s_add_u32 s37, s37, 114688
    v_add_u32 v45, s37, v45
    v_cmp_gt_u32 vcc, 8, v44
    s_nop 7
    s_nop 3
    s_and_saveexec_b64 s[56:57], vcc
    """)
    for q in range(4):
        a(f"ds_write_b128 v45, v[{8+4*q}:{11+4*q}] offset:{q*32}")
    a("""
    s_mov_b64 exec, -1
    s_waitcnt lgkmcnt(0)
    s_barrier
    v_cmp_gt_u32 vcc, 256, v0
    s_and_saveexec_b64 s[56:57], vcc
    s_cbranch_execz Lk6_end
    v_lshlrev_b32 v44, 2, v0
    v_add_u32 v44, 0x1c000, v44
    """)
    for w in range(8):
        a(f"ds_read_b32 v{8+w}, v44 offset:{w*1024}")
    a("""
    s_waitcnt lgkmcnt(0)
    v_add_f32 v8, v8, v9
    v_add_f32 v10, v10, v11
    v_add_f32 v12, v12, v13
    v_add_f32 v14, v14, v15
    v_add_f32 v8, v8, v10
    v_add_f32 v12, v12, v14
    v_add_f32 v8, v8, v12
    """)
    round_bf16(a, 8, 8)
    a("s_waitcnt vmcnt(0)")
    a("v_mul_f32 v8, v8, v27")
    round_bf16(a, 8, 8)
    a("""
    v_lshlrev_b32 v31, 16, v31
    v_lshlrev_b32 v32, 16, v32
    v_add_f32 v8, v8, v31
    """)
    round_bf16(a, 8, 8)
    a("v_mul_f32 v8, v8, v30")
    round_bf16(a, 8, 8)
    a("""
    v_add_f32 v8, v8, v32
    v_cvt_pk_bf16_f32 v8, v8, v8
    buffer_store_short v8, v26, s[32:35], 0 offen
    """)
    a.label("Lk6_end")
    a("s_endpgm")
    return kernel_desc("moe2_kernel", 152, sgpr=64)
```

```python
from genlib import *
from gen_small import *
from gen_moe import *
WS_Y = WS_ACT + 65536

def gen_moe(a):
    WD = 65536; RED = 98304; ACTL = 106496; FLG = 107008
    kernel_begin(a, "moe_kernel")
    a("""
    s_cmp_ge_u32 s2, 56
    s_cbranch_scc1 Lk5_end
    s_load_dwordx2 s[4:5], s[0:1], 56     ; w_gate
    s_load_dwordx2 s[6:7], s[0:1], 64     ; w_up
    s_load_dwordx2 s[8:9], s[0:1], 112    ; ws
    s_load_dwordx2 s[10:11], s[0:1], 72   ; w_down
    s_load_dwordx2 s[64:65], s[0:1], 96   ; out
    s_load_dwordx2 s[66:67], s[0:1], 104  ; debug
    v_and_b32 v1, 63, v0
    v_lshrrev_b32 v2, 6, v0
    s_nop 0
    v_readfirstlane_b32 s3, v2            ; wave
    v_lshrrev_b32 v3, 2, v1
    s_mov_b32 s36, 3584
    v_mul_lo_u32 v3, v3, s36
    v_and_b32 v4, 3, v1
    v_lshlrev_b32 v4, 4, v4
    v_add_u32 v3, v3, v4
    v_lshlrev_b32 v4, 4, v1               ; lane*16
    s_waitcnt lgkmcnt(0)
    s_lshr_b32 s36, s3, 2
    s_cmp_eq_u32 s36, 0
    s_cselect_b32 s12, s4, s6
    s_cselect_b32 s13, s5, s7
    s_mov_b32 s14, 0x1c0000
    s_mov_b32 s15, 0x00020000
    """)
    srd(a, 16, 10, 1792 * 512 * 2)
    srd(a, 20, 8, 2048 * 4, WS_KEY)
    srd(a, 24, 8, 2048 * 512 * 2, WS_H2)
    srd(a, 28, 8, 8 * 512 * 4, WS_Y)
    srd(a, 32, 8, 2048 * 512 * 2, WS_X2)
    srd(a, 60, 8, 2048 * 4, WS_R)
    srd(a, 68, 64, 2048 * 512 * 2)
    srd(a, 72, 66, 256)
    srd(a, 76, 8, 3072 * 4, WS_MOD)
    K, T, T1, T2 = top8k(a, 1, 20, 8, 40, 48)
    a("""
    s_and_b32 s36, s3, 3
    s_mul_i32 s37, s36, 458752            ; 128 rows * 3584
    s_lshl_b32 s38, s2, 6
    s_add_u32 s37, s37, s38
    s_lshl_b32 s38, s3, 13
    """)
    for c in range(8):
        a(f"s_add_u32 m0, s38, {c*1024}")
        a("s_nop 0")
        a("buffer_load_dwordx4 v3, s[12:15], s37 offen lds")
        if c < 7: a("s_add_u32 s37, s37, 57344")
    a("""
    s_lshl_b32 s37, s2, 15
    s_lshl_b32 s39, s3, 12
    s_add_u32 s37, s37, s39
    """)
    for i in range(4):
        a(f"v_xor_b32 v44, {i << 6}, v4")
        a(f"s_add_u32 m0, s39, {WD + i*1024}")
        a("s_nop 0")
        a("buffer_load_dwordx4 v44, s[16:19], s37 offen lds")
        if i < 3: a("s_add_u32 s37, s37, 1024")
    tr_addr64(a, 5, 1, 6, 7)
    a("v_add_u32 v5, s38, v5")
    a("s_waitcnt vmcnt(12)")
    top8k_compute(a, K, T, T1, T2, 40, 48)
    a("v_and_b32 v6, 7, v1")
    sel8(a, 7, 6, 44, 40)
    a("""
    v_lshlrev_b32 v7, 10, v7
    v_lshrrev_b32 v44, 5, v1
    v_lshlrev_b32 v44, 4, v44
    v_add_u32 v7, v7, v44
    s_lshl_b32 s37, s36, 8
    """)
    for s in range(8):
        a(f"buffer_load_dwordx4 v[{64+4*s}:{67+4*s}], v7, s[24:27], s37 offen offset:{s*32}")
    a(f"""
    v_lshrrev_b32 v24, 5, v1              ; u
    v_and_b32 v25, 15, v1
    v_lshrrev_b32 v25, 2, v25             ; r
    v_lshlrev_b32 v26, 3, v24
    v_add_u32 v26, v26, v25               ; 8u + r
    v_lshlrev_b32 v26, 10, v26
    v_lshrrev_b32 v27, 4, v1
    v_and_b32 v27, 1, v27
    v_lshlrev_b32 v27, 5, v27
    v_add_u32 v26, v26, v27
    v_and_b32 v27, 3, v1
    v_lshlrev_b32 v27, 3, v27
    v_add_u32 v26, v26, v27               ; (8u+r)*1024 + 32g + 8c
    s_lshr_b32 s37, s3, 1                 ; nt>>2 = (2w+x)>>2 = w>>1
    s_lshl_b32 s37, s37, 8
    s_add_u32 s37, s37, {WD}
    v_add_u32 v26, s37, v26
    s_and_b32 s37, s3, 1
    s_lshl_b32 s37, s37, 1
    v_xor_b32 v27, s37, v25
    v_lshlrev_b32 v27, 6, v27
    v_add_u32 v28, v26, v27               ; addr x=0
    s_add_u32 s37, s37, 1
    v_xor_b32 v27, s37, v25
    v_lshlrev_b32 v27, 6, v27
    v_add_u32 v29, v26, v27               ; addr x=1
    v_lshlrev_b32 v30, 6, v6              ; (l&7)*64
    v_lshlrev_b32 v27, 4, v24
    v_add_u32 v30, v30, v27
    v_add_u32 v30, {ACTL}, v30
    v_and_b32 v31, 31, v1
    v_lshlrev_b32 v31, 2, v31
    v_lshlrev_b32 v27, 13, v24
    v_add_u32 v31, v31, v27               ; y voffset = (l&31)*4 + u*4*2048
    s_waitcnt vmcnt(0)
    """)
    for s in range(8):
        a(f"ds_read_b64_tr_b16 v[{96+4*s}:{97+4*s}], v5 offset:{s*1024}")
        a(f"ds_read_b64_tr_b16 v[{98+4*s}:{99+4*s}], v5 offset:{s*1024+256}")
    for s in range(8):
        a(f"s_waitcnt lgkmcnt({2*(7-s)})")
        c = "0" if s == 0 else "v[8:23]"
        a(f"v_mfma_f32_32x32x16_bf16 v[8:23], v[{96+4*s}:{99+4*s}], v[{64+4*s}:{67+4*s}], {c}")
    a(f"""
    v_and_b32 v44, 31, v1
    v_lshlrev_b32 v45, 7, v44
    v_lshrrev_b32 v46, 5, v1
    v_lshlrev_b32 v46, 4, v46
    v_add_u32 v45, v45, v46
    s_lshl_b32 s37, s3, 10
    s_add_u32 s37, s37, {RED}
    v_add_u32 v45, s37, v45
    v_cmp_gt_u32 vcc, 8, v44
    s_nop 7
    s_nop 3
    s_and_saveexec_b64 s[56:57], vcc
    """)
    for q in range(4):
        a(f"ds_write_b128 v45, v[{8+4*q}:{11+4*q}] offset:{q*32}")
    a(f"""
    s_mov_b64 exec, -1
    s_waitcnt lgkmcnt(0)
    s_barrier
    s_cmp_ge_u32 s3, 4
    s_cbranch_scc1 Lk5_noact
    v_lshlrev_b32 v44, 2, v0
    v_add_u32 v44, {RED}, v44
    """)
    for w in range(8):
        a(f"ds_read_b32 v{8+w}, v44 offset:{w*1024}")
    a("""
    s_waitcnt lgkmcnt(0)
    v_add_f32 v8, v8, v9
    v_add_f32 v10, v10, v11
    v_add_f32 v8, v8, v10
    v_add_f32 v12, v12, v13
    v_add_f32 v14, v14, v15
    v_add_f32 v12, v12, v14
    """)
    round_bf16(a, 8, 8)
    round_bf16(a, 12, 12)
    a(f"""
    s_mov_b32 s36, {LOG2E:#x}
    v_mul_f32 v9, s36, v8
    v_exp_f32 v9, -v9
    s_nop 0
    v_add_f32 v9, 1.0, v9
    v_rcp_f32 v9, v9
    s_nop 0
    v_mul_f32 v8, v8, v9
    """)
    round_bf16(a, 8, 8)
    a(f"""
    v_mul_f32 v8, v8, v12
    v_cvt_pk_bf16_f32 v8, v8, v8
    v_lshlrev_b32 v44, 1, v0
    v_add_u32 v44, {ACTL}, v44
    ds_write_b16 v44, v8
    """)
    a.label("Lk5_noact")
    a("""
    s_waitcnt lgkmcnt(0)
    s_barrier
    ds_read_b128 v[64:67], v30
    ds_read_b128 v[68:71], v30 offset:32
    """)
    for x in range(2):
        for s in range(2):
            b = 72 + 8 * x + 4 * s
            a(f"ds_read_b64_tr_b16 v[{b}:{b+1}], v{28+x} offset:{s*16384}")
            a(f"ds_read_b64_tr_b16 v[{b+2}:{b+3}], v{28+x} offset:{s*16384+4096}")
    a("s_waitcnt lgkmcnt(0)")
    for x in range(2):
        d = 8 + 16 * x + (72 if x else 0)
        d = 96 + 16 * x
        a(f"v_mfma_f32_32x32x16_bf16 v[{d}:{d+15}], v[64:67], v[{72+8*x}:{75+8*x}], 0")
        a(f"v_mfma_f32_32x32x16_bf16 v[{d}:{d+15}], v[68:71], v[{76+8*x}:{79+8*x}], v[{d}:{d+15}]")
    a("""
    s_lshl_b32 s37, s3, 8                 ; 2w * 32 * 4
    s_nop 15
    """)
    a("s_add_u32 s39, s37, 4096")
    for x in range(2):
        for i in range(4):
            a(f"buffer_atomic_add_f32 v{96+16*x+i}, v31, s[28:31], s{37 if i < 2 else 39} offen offset:{x*128 + (i & 1)*2048}")
    a(f"""
    s_waitcnt vmcnt(0)
    s_barrier
    s_cmp_lg_u32 s3, 0
    s_cbranch_scc1 Lk5_wait
    v_mov_b32 v44, 1
    v_mov_b32 v45, 0
    s_mov_b64 exec, 1
    buffer_atomic_add v44, v45, s[72:75], 0 offen sc0 sc1
    s_waitcnt vmcnt(0)
    v_mov_b32 v45, {FLG}
    ds_write_b32 v45, v44
    s_mov_b64 exec, -1
    s_waitcnt lgkmcnt(0)
    """)
    a.label("Lk5_wait")
    a(f"""
    s_barrier
    v_mov_b32 v45, {FLG}
    ds_read_b32 v44, v45
    s_waitcnt lgkmcnt(0)
    s_nop 0
    v_readfirstlane_b32 s36, v44
    s_nop 3
    s_cmp_lg_u32 s36, 55
    s_cbranch_scc1 Lk5_end
    """)
    for t in range(8):
        a(f"s_cmp_eq_u32 s3, {t}")
        a(f"s_cselect_b32 s39, s{40+t}, s39")
    a("""
    v_lshlrev_b32 v44, 5, v1
    s_lshl_b32 s37, s3, 11
    """)
    for j in range(8):
        a(f"v_mov_b32 v{8+j}, 0")
    for j in range(8):
        a(f"buffer_atomic_add_f32 v{8+j}, v44, s[28:31], s37 offen offset:{4*j} sc0")
    a(f"""
    s_lshl_b32 s36, s39, 10
    buffer_load_dwordx4 v[16:19], v4, s[24:27], s36 offen      ; h2
    buffer_load_dwordx4 v[20:23], v4, s[32:35], s36 offen      ; x2
    s_mov_b32 s37, 10240
    buffer_load_dwordx4 v[24:27], v44, s[76:79], s37 offen     ; gb
    buffer_load_dwordx4 v[28:31], v44, s[76:79], s37 offen offset:16
    s_lshl_b32 s37, s39, 2
    v_mov_b32 v45, 0
    buffer_load_dword v46, v45, s[60:63], s37 offen            ; r
    s_waitcnt vmcnt(0)
    s_mov_b32 s37, {LOG2E:#x}
    v_mul_f32 v46, s37, v46
    v_exp_f32 v46, -v46
    s_nop 0
    v_add_f32 v46, 1.0, v46
    v_rcp_f32 v46, v46
    s_nop 0
    """)
    round_bf16(a, 46, 46)
    for j in range(4):
        unpack_bf16(a, 32 + 2 * j, 33 + 2 * j, 16 + j)
        unpack_bf16(a, 64 + 2 * j, 65 + 2 * j, 20 + j)
    for j in range(8):
        round_bf16(a, 8 + j, 8 + j)
        a(f"v_mul_f32 v{8+j}, v{8+j}, v46")
        round_bf16(a, 8 + j, 8 + j)
        a(f"v_add_f32 v{8+j}, v{8+j}, v{32+j}")
        round_bf16(a, 8 + j, 8 + j)
        a(f"v_mul_f32 v{8+j}, v{8+j}, v{24+j}")
        round_bf16(a, 8 + j, 8 + j)
        a(f"v_add_f32 v{8+j}, v{8+j}, v{64+j}")
    for j in range(4):
        a(f"v_cvt_pk_bf16_f32 v{72+j}, v{8+2*j}, v{9+2*j}")
    a("buffer_store_dwordx4 v[72:75], v4, s[68:71], s36 offen")
    a.label("Lk5_end")
    a("s_endpgm")
    return kernel_desc("moe_kernel", 128, sgpr=88)
```

```python
from genlib import *
from gen_small import *

def gen_prep2(a):
    kernel_begin(a, "prep_kernel")
    a("""
    s_cmp_ge_u32 s2, 176
    s_cbranch_scc1 Lk0_end
    s_load_dwordx2 s[4:5], s[0:1], 80
    s_load_dwordx2 s[6:7], s[0:1], 88
    s_load_dwordx2 s[8:9], s[0:1], 112
    s_load_dwordx2 s[10:11], s[0:1], 0
    s_load_dwordx2 s[30:31], s[0:1], 104
    s_cmp_ge_u32 s2, 48
    s_cbranch_scc1 Lk0_h1
    v_and_b32 v1, 7, v0
    v_lshrrev_b32 v2, 3, v0
    v_lshlrev_b32 v3, 5, v2
    s_mov_b32 s24, 98304
    v_mul_lo_u32 v28, v2, s24
    v_lshlrev_b32 v29, 4, v1
    v_add_u32 v28, v28, v29
    s_lshl_b32 s25, s2, 7
    s_waitcnt lgkmcnt(0)
    """)
    srd(a, 12, 4, 1024)
    srd(a, 16, 6, 512 * 3072 * 2)
    srd(a, 20, 8, 3072 * 4, WS_MOD)
    srd(a, 32, 30, 256)
    a("buffer_load_dwordx4 v[4:7], v3, s[12:15], 0 offen")
    a("buffer_load_dwordx4 v[8:11], v3, s[12:15], 0 offen offset:16")
    for kk in range(16):
        a(f"buffer_load_dwordx4 v[{32+4*kk}:{35+4*kk}], v28, s[16:19], s25 offen")
        if kk < 15:
            a("s_add_u32 s25, s25, 6144")
    a("s_waitcnt vmcnt(16)")
    for j in range(8):
        unpack_bf16(a, 12 + 2 * j, 13 + 2 * j, 4 + j)
    a(f"s_mov_b32 s26, {LOG2E:#x}")
    for k in range(16):
        v = 12 + k
        a(f"v_mul_f32 v30, s26, v{v}")
        a(f"v_exp_f32 v30, -v30")
        a("s_nop 0")
        a(f"v_add_f32 v30, 1.0, v30")
        a(f"v_rcp_f32 v30, v30")
        a("s_nop 0")
        a(f"v_mul_f32 v{v}, v{v}, v30")
        round_bf16(a, v, v)
    for j in range(8):
        a(f"v_mov_b32 v{96+j}, 0")
    for kk in range(16):
        a(f"s_waitcnt vmcnt({15-kk})")
        for j in range(4):
            unpack_bf16(a, 30, 31, 32 + 4 * kk + j)
            a(f"v_fmac_f32 v{96+2*j}, v{12+kk}, v30")
            a(f"v_fmac_f32 v{97+2*j}, v{12+kk}, v31")
    a("""
    v_lshlrev_b32 v3, 8, v2
    v_lshlrev_b32 v29, 5, v1
    v_add_u32 v3, v3, v29
    ds_write_b128 v3, v[96:99]
    ds_write_b128 v3, v[100:103] offset:16
    s_waitcnt lgkmcnt(0)
    s_barrier
    v_cmp_gt_u32 vcc, 64, v0
    s_and_saveexec_b64 s[28:29], vcc
    s_cbranch_execz Lk0_end
    v_lshlrev_b32 v3, 2, v0
    """)
    for ks in range(32):
        a(f"ds_read_b32 v{32+ks}, v3 offset:{ks*256}")
    a("s_waitcnt lgkmcnt(0)")
    for ks in range(1, 32):
        a(f"v_add_f32 v32, v32, v{32+ks}")
    round_bf16(a, 32, 32)
    a("""
    s_lshl_b32 s25, s2, 8
    buffer_store_dword v32, v3, s[20:23], s25 offen sc0 sc1
    s_cmp_ge_u32 s2, 16
    s_cbranch_scc1 Lk0_end
    s_waitcnt vmcnt(0)
    v_mov_b32 v4, 1
    v_mov_b32 v5, 0
    s_mov_b64 exec, 1
    buffer_atomic_add v4, v5, s[32:35], 0 offen sc1
    s_branch Lk0_end
    """)
    a.label("Lk0_h1")
    a("""
    v_and_b32 v1, 63, v0
    v_lshrrev_b32 v2, 6, v0
    s_sub_u32 s24, s2, 48
    s_lshl_b32 s24, s24, 2
    v_add_u32 v2, s24, v2
    v_lshlrev_b32 v2, 2, v2
    v_lshlrev_b32 v3, 10, v2
    v_lshlrev_b32 v4, 4, v1
    v_add_u32 v3, v3, v4
    v_lshlrev_b32 v5, 5, v1
    s_waitcnt lgkmcnt(0)
    """)
    srd(a, 12, 10, 2048 * 512 * 2)
    srd(a, 16, 8, 3072 * 4, WS_MOD)
    srd(a, 20, 8, 2048 * 512 * 2, WS_H1F)
    srd(a, 32, 30, 256)
    for r in range(4):
        a(f"buffer_load_dwordx4 v[{8+4*r}:{11+4*r}], v3, s[12:15], 0 offen offset:{r*1024}")
    a("""
    v_lshrrev_b32 v6, 5, v2
    v_lshlrev_b32 v6, 15, v6
    v_lshrrev_b32 v7, 1, v1
    v_lshlrev_b32 v7, 10, v7
    v_add_u32 v6, v6, v7
    v_and_b32 v7, 31, v2
    v_lshlrev_b32 v7, 4, v7
    v_add_u32 v6, v6, v7
    v_and_b32 v7, 1, v1
    v_lshlrev_b32 v7, 9, v7
    v_add_u32 v6, v6, v7
    s_waitcnt vmcnt(0)
    """)
    for r in range(4):
        x0 = 32
        for j in range(4):
            unpack_bf16(a, x0 + 2 * j, x0 + 1 + 2 * j, 8 + 4 * r + j)
        t0, t1, t2, t3 = 24, 25, 26, 27
        a(f"v_add_f32 v{t0}, v{x0}, v{x0+1}")
        for j in range(2, 8):
            a(f"v_add_f32 v{t0}, v{t0}, v{x0+j}")
        wave_allreduce(a, t0, t1, t2)
        a(f"v_mul_f32 v{t0}, 0x3b000000, v{t0}")
        a(f"v_sub_f32 v{t1}, v{x0}, v{t0}")
        a(f"v_mul_f32 v{t3}, v{t1}, v{t1}")
        for j in range(1, 8):
            a(f"v_sub_f32 v{t1}, v{x0+j}, v{t0}")
            a(f"v_fmac_f32 v{t3}, v{t1}, v{t1}")
        wave_allreduce(a, t3, t1, t2)
        a(f"v_mul_f32 v{t3}, 0x3b000000, v{t3}")
        round_bf16(a, t0, t0)
        round_bf16(a, t3, t3)
        a(f"v_add_f32 v{t3}, 0x3727c5ac, v{t3}")
        round_bf16(a, t3, t3)
        a(f"v_sqrt_f32 v{t3}, v{t3}")
        a("s_nop 0")
        round_bf16(a, t3, t3)
        a(f"v_rcp_f32 v{t3}, v{t3}")
        a("s_nop 0")
        for j in range(8):
            o = 64 + 8 * r + j
            a(f"v_sub_f32 v{o}, v{x0+j}, v{t0}")
            round_bf16(a, o, o)
            a(f"v_mul_f32 v{o}, v{o}, v{t3}")
            round_bf16(a, o, o)
    a("v_mov_b32 v28, 0")
    a.label("Lk0_poll")
    a("""
    buffer_load_dword v29, v28, s[32:35], 0 offen sc0 sc1
    s_waitcnt vmcnt(0)
    v_readfirstlane_b32 s24, v29
    s_nop 3
    s_cmp_ge_u32 s24, 16
    s_cbranch_scc1 Lk0_go
    s_sleep 2
    s_branch Lk0_poll
    """)
    a.label("Lk0_go")
    a("""
    buffer_load_dwordx4 v[40:43], v5, s[16:19], 0 offen sc0 sc1
    buffer_load_dwordx4 v[44:47], v5, s[16:19], 0 offen offset:16 sc0 sc1
    buffer_load_dwordx4 v[48:51], v5, s[16:19], 0 offen offset:2048 sc0 sc1
    buffer_load_dwordx4 v[52:55], v5, s[16:19], 0 offen offset:2064 sc0 sc1
    s_waitcnt vmcnt(0)
    """)
    for j in range(8):
        a(f"v_add_f32 v{48+j}, 1.0, v{48+j}")
        round_bf16(a, 48 + j, 48 + j)
    for r in range(4):
        for j in range(8):
            o = 64 + 8 * r + j
            a(f"v_mul_f32 v{o}, v{o}, v{48+j}")
            round_bf16(a, o, o)
            a(f"v_add_f32 v{o}, v{o}, v{40+j}")
        for j in range(4):
            a(f"v_cvt_pk_bf16_f32 v{8+4*r+j}, v{64+8*r+2*j}, v{65+8*r+2*j}")
        a(f"buffer_store_dwordx4 v[{8+4*r}:{11+4*r}], v6, s[20:23], 0 offen offset:{16*r}")
    a.label("Lk0_end")
    a("s_endpgm")
    return kernel_desc("prep_kernel", 104, sgpr=64)
```

```python
from genlib import *
from gen_small import *
import os
import gen_moe, gen_moe2
XF = set(os.environ.get('XF', '').split(','))

def gen_k3(a):
    kernel_begin(a, "oproj_kernel")
    S_W = 3; S_MT = 4; S_NT = 5; S_KSP = 6; S_T0 = 7
    S_SRDW = 8; S_SRDO = 12; S_SRDP = 16; S_WOFF = 20; S_OOFF = 21; S_T1 = 22; S_W1K = 23; S_W4K = 24
    V_WDMA = 1; V_L16 = 2; V_AA = 4
    V_BA = 6
    V_F = 8
    V_ACC = 56
    a(f"""
    s_cmp_ge_u32 s2, 256
    s_cbranch_scc1 Lk3_end
    s_load_dwordx2 s[36:37], s[0:1], 32     ; wo
    s_load_dwordx2 s[42:43], s[0:1], 112    ; ws
    s_and_b32 s{S_T0}, s2, 7
    s_and_b32 s{S_KSP}, s{S_T0}, 3
    s_lshr_b32 s{S_T0}, s{S_T0}, 2
    s_lshl_b32 s{S_MT}, s{S_T0}, 3
    s_lshr_b32 s{S_T0}, s2, 3
    s_and_b32 s{S_NT}, s{S_T0}, 3
    s_lshr_b32 s{S_T0}, s{S_T0}, 2
    s_add_u32 s{S_MT}, s{S_MT}, s{S_T0}
    v_lshrrev_b32 v1, 6, v0
    s_nop 0
    v_readfirstlane_b32 s{S_W}, v1
    v_and_b32 v0, 63, v0
    s_lshl_b32 s{S_W1K}, s{S_W}, 10
    s_lshl_b32 s{S_W4K}, s{S_W}, 12
    v_lshlrev_b32 v{V_L16}, 4, v0
    v_lshrrev_b32 v20, 4, v0            ; i>>4
    v_and_b32 v21, 15, v0
    v_lshlrev_b32 v22, 2, v20
    v_xor_b32 v22, v22, v21
    v_lshlrev_b32 v22, 4, v22
    v_lshlrev_b32 v23, 10, v20
    v_add_u32 v{V_WDMA}, v22, v23       ; (i>>4)*1024 + swz*16
    ; tr read addr: (4u + r)*256 + 64*(t^r) + 32g + 8c ; t = 2*wn + x
    v_lshrrev_b32 v20, 2, v21           ; r
    v_lshrrev_b32 v23, 4, v0
    v_and_b32 v23, 1, v23
    v_lshlrev_b32 v23, 5, v23
    v_and_b32 v21, 3, v0
    v_lshlrev_b32 v21, 3, v21
    v_add_u32 v21, v21, v23
    v_lshlrev_b32 v23, 8, v20
    v_add_u32 v21, v21, v23
    v_lshrrev_b32 v22, 5, v0
    v_lshlrev_b32 v23, 10, v22
    v_add_u32 v21, v21, v23
    s_and_b32 s{S_T0}, s{S_W}, 1        ; wn
    s_lshl_b32 s{S_T0}, s{S_T0}, 1
    v_xor_b32 v22, s{S_T0}, v20
    v_lshlrev_b32 v22, 6, v22
    v_add_u32 v{V_AA}, v22, v21
    s_add_u32 s{S_T0}, s{S_T0}, 1
    v_xor_b32 v22, s{S_T0}, v20
    v_lshlrev_b32 v22, 6, v22
    v_add_u32 v{V_AA+1}, v22, v21
    s_lshr_b32 s{S_T0}, s{S_W}, 1
    s_lshl_b32 s{S_T0}, s{S_T0}, 13
    s_add_u32 s{S_T0}, s{S_T0}, 16384
    v_add_u32 v{V_BA}, s{S_T0}, v{V_L16}
    s_waitcnt lgkmcnt(0)
    """)
    srd(a, S_SRDW, 36, 4096 * 512 * 2)
    srd(a, S_SRDO, 42, 2048 * 4096 * 2, WS_OF)
    srd(a, S_SRDP, 42, 4 * 2048 * 512 * 4, WS_PART)
    a(f"""
    s_lshl_b32 s{S_WOFF}, s{S_KSP}, 20
    s_lshl_b32 s{S_T0}, s{S_NT}, 8
    s_add_u32 s{S_WOFF}, s{S_WOFF}, s{S_T0}
    s_add_u32 s{S_WOFF}, s{S_WOFF}, s{S_W4K}
    s_lshl_b32 s{S_OOFF}, s{S_MT}, 2
    s_add_u32 s{S_OOFF}, s{S_OOFF}, s{S_W}
    s_lshl_b32 s{S_OOFF}, s{S_OOFF}, 18
    s_lshl_b32 s{S_T0}, s{S_KSP}, 16
    s_add_u32 s{S_OOFF}, s{S_OOFF}, s{S_T0}
    """)
    def dma_stage(st):
        base = (st % 4) * 32768
        out = []
        for x in range(4):
            out.append([f"s_add_u32 m0, s{S_W1K}, {base + x*4096}",
                        f"s_add_u32 s{S_T1}, s{S_WOFF}, {x*16384}",
                        f"buffer_load_dwordx4 v{V_WDMA}, s[{S_SRDW}:{S_SRDW+3}], s{S_T1} offen lds"])
        for x in range(4):
            g = []
            if x == 0:
                g += [f"s_add_u32 m0, s{S_W4K}, {base + 16384}", f"s_add_u32 s{S_WOFF}, s{S_WOFF}, 65536"]
            g += [f"buffer_load_dwordx4 v{V_L16}, s[{S_SRDO}:{S_SRDO+3}], s{S_OOFF} offen offset:{x*1024} lds"]
            if x == 3:
                g += [f"s_add_u32 s{S_OOFF}, s{S_OOFF}, 4096"]
            out.append(g)
        return out
    for st in range(3):
        for g in dma_stage(st):
            for t in g: a(t)
    def reads(gk):
        st, s = gk // 4, gk % 4
        base = (st % 4) * 32768
        f = V_F + 16 * (gk % 3)
        r = []
        for x in range(2):
            r.append((f + 4 * x, V_AA + x, base + s * 4096, 'tr'))
        for x in range(2):
            r.append((f + 8 + 4 * x, V_BA, base + x * 4096 + s * 1024, 'b128'))
        return r
    a(f"v_add_u32 v3, 0x10000, v{V_BA}")
    a(f"v_add_u32 v120, 0x10000, v{V_AA}")
    a(f"v_add_u32 v121, 0x10000, v{V_AA+1}")
    def read_list(gk):
        out = []
        for (dst, ar, off, kind) in reads(gk):
            if off >= 65536:
                off -= 65536; ar = 3 if kind == 'b128' else 120 + (ar - V_AA)
            if kind == 'tr':
                out.append(f"ds_read_b64_tr_b16 v[{dst}:{dst+1}], v{ar} offset:{off}")
                out.append(f"ds_read_b64_tr_b16 v[{dst+2}:{dst+3}], v{ar} offset:{off+2048}")
            else:
                out.append(f"ds_read_b128 v[{dst}:{dst+3}], v{ar} offset:{off}")
        return out
    NK = 64
    for st in range(16):
        a(f"s_waitcnt vmcnt({8 if (st < 14 and 'k3nodma' not in XF) else 0})")
        a("s_barrier")
        if st == 0:
            for t in read_list(0) + read_list(1): a(t)
        dm = dma_stage(st + 3) if (st + 3 < 16 and 'k3nodma' not in XF) else []
        for s in range(4):
            gk = st * 4 + s
            a(f"s_waitcnt lgkmcnt({6 if gk + 1 < NK else 0})")
            f = V_F + 16 * (gk % 3)
            rl = read_list(gk + 2) if gk + 2 < NK else []
            k = 0
            for x in range(2):
                for y in range(2):
                    d = V_ACC + 16 * (2 * x + y)
                    c = "0" if gk == 0 else f"v[{d}:{d+15}]"
                    if 'k3nomf' not in XF: a(f"v_mfma_f32_32x32x16_bf16 v[{d}:{d+15}], v[{f+8+4*y}:{f+8+4*y+3}], v[{f+4*x}:{f+4*x+3}], {c}")
                    for t in rl[2*k:2*k+2]: a(t)
                    if k % 2 == 1 and dm:
                        for t in dm.pop(0): a(t)
                    k += 1
    a(f"""
    s_nop 15
    v_and_b32 v20, 31, v0
    v_lshlrev_b32 v20, 2, v20
    v_lshrrev_b32 v21, 5, v0
    v_lshlrev_b32 v21, 13, v21
    v_add_u32 v20, v20, v21
    s_lshl_b32 s{S_T0}, s{S_KSP}, 22
    s_lshl_b32 s{S_T1}, s{S_MT}, 18
    s_add_u32 s{S_T0}, s{S_T0}, s{S_T1}
    s_lshr_b32 s{S_T1}, s{S_W}, 1
    s_lshl_b32 s{S_T1}, s{S_T1}, 17
    s_add_u32 s{S_T0}, s{S_T0}, s{S_T1}
    s_lshl_b32 s{S_T1}, s{S_NT}, 9
    s_add_u32 s{S_T0}, s{S_T0}, s{S_T1}
    s_and_b32 s{S_T1}, s{S_W}, 1
    s_lshl_b32 s{S_T1}, s{S_T1}, 8
    s_add_u32 s{S_T0}, s{S_T0}, s{S_T1}
    """)
    for y in range(2):
        for i in range(16):
            row = y * 32 + 8 * (i >> 2) + (i & 3)
            if i & 1 == 0:
                a(f"s_add_u32 s{S_T1}, s{S_T0}, {row * 2048}")
            for x in range(2):
                d = V_ACC + 16 * (2 * x + y)
                if 'k3nost' in XF and (x or y or i): continue
                a(f"buffer_store_dword v{d+i}, v20, s[{S_SRDP}:{S_SRDP+3}], s{S_T1} offen offset:{x*128 + (i&1)*2048}")
    a.label("Lk3_end")
    a("s_endpgm")
    return kernel_desc("oproj_kernel", 128, sgpr=64)

def gen_k4(a):
    kernel_begin(a, "post_kernel")
    a("""
    s_cmp_ge_u32 s2, 512
    s_cbranch_scc1 Lk4_end
    s_load_dwordx2 s[4:5], s[0:1], 0      ; x
    s_load_dwordx2 s[6:7], s[0:1], 48     ; w_r
    s_load_dwordx2 s[8:9], s[0:1], 112    ; ws
    s_load_dwordx2 s[10:11], s[0:1], 96   ; out
    v_and_b32 v1, 63, v0
    v_lshrrev_b32 v2, 6, v0
    s_lshl_b32 s44, s2, 2
    v_add_u32 v2, s44, v2            ; row
    v_lshlrev_b32 v3, 10, v2
    v_lshlrev_b32 v4, 4, v1
    v_add_u32 v3, v3, v4
    v_lshlrev_b32 v5, 5, v1
    v_lshlrev_b32 v6, 1, v3
    s_waitcnt lgkmcnt(0)
    """)
    srd(a, 12, 4, 2048 * 512 * 2)
    srd(a, 16, 8, 3072 * 4, WS_MOD)
    srd(a, 20, 8, 4 * 2048 * 512 * 4, WS_PART)
    srd(a, 24, 6, 1024)
    srd(a, 28, 10, 2048 * 512 * 2)
    srd(a, 32, 8, 2048 * 512 * 2, WS_X2)
    srd(a, 36, 8, 2048 * 512 * 2, WS_H2)
    srd(a, 40, 8, 65536 + 2048 * 4, WS_R)
    srd(a, 48, 8, 8 * 512 * 4, gen_moe2.WS_Y)
    a("""
    s_cmp_ge_u32 s2, 16
    s_cbranch_scc1 Lk4_noz
    v_lshlrev_b32 v7, 2, v0
    v_mov_b32 v8, 0
    s_lshl_b32 s45, s2, 10
    buffer_store_dword v8, v7, s[48:51], s45 offen
    """)
    a.label("Lk4_noz")
    a("s_mov_b32 s45, 0")
    for p in range(4):
        a(f"buffer_load_dwordx4 v[{64+8*p}:{67+8*p}], v6, s[20:23], s45 offen")
        a(f"buffer_load_dwordx4 v[{68+8*p}:{71+8*p}], v6, s[20:23], s45 offen offset:16")
        if p < 3: a("s_add_u32 s45, s45, 0x400000")
    a("""
    buffer_load_dwordx4 v[8:11], v3, s[12:15], 0 offen
    buffer_load_dwordx4 v[96:99], v4, s[24:27], 0 offen
    s_mov_b32 s45, 4096
    buffer_load_dwordx4 v[100:103], v5, s[16:19], s45 offen           ; ga
    buffer_load_dwordx4 v[104:107], v5, s[16:19], s45 offen offset:16
    buffer_load_dwordx4 v[16:19], v5, s[16:19], s45 offen offset:2048  ; sb
    buffer_load_dwordx4 v[20:23], v5, s[16:19], s45 offen offset:2064
    s_mov_b32 s45, 8192
    buffer_load_dwordx4 v[24:27], v5, s[16:19], s45 offen             ; cb
    buffer_load_dwordx4 v[28:31], v5, s[16:19], s45 offen offset:16
    buffer_load_dwordx4 v[108:111], v5, s[16:19], s45 offen offset:2048 ; gb
    buffer_load_dwordx4 v[112:115], v5, s[16:19], s45 offen offset:2064
    s_waitcnt vmcnt(0)
    """)
    for j in range(4):
        unpack_bf16(a, 32 + 2 * j, 33 + 2 * j, 8 + j)
    for j in range(8):
        a(f"v_add_f32 v{64+j}, v{64+j}, v{72+j}")
        a(f"v_add_f32 v{80+j}, v{80+j}, v{88+j}")
        a(f"v_add_f32 v{64+j}, v{64+j}, v{80+j}")
        round_bf16(a, 64 + j, 64 + j)
        a(f"v_mul_f32 v{64+j}, v{64+j}, v{100+j}")
        round_bf16(a, 64 + j, 64 + j)
        a(f"v_add_f32 v{32+j}, v{32+j}, v{64+j}")
        round_bf16(a, 32 + j, 32 + j)
    ln_mod(a, 32, 12, 24, 16, 40)
    for j in range(4):
        unpack_bf16(a, 64 + 2 * j, 65 + 2 * j, 96 + j)
    a("v_mul_f32 v72, v40, v64")
    for j in range(1, 8):
        a(f"v_fmac_f32 v72, v{40+j}, v{64+j}")
    wave_allreduce(a, 72, 73, 74)
    round_bf16(a, 72, 72)
    for j in range(4):
        a(f"v_cvt_pk_bf16_f32 v{48+j}, v{40+2*j}, v{41+2*j}")
        a(f"v_cvt_pk_bf16_f32 v{52+j}, v{32+2*j}, v{33+2*j}")
    a("buffer_store_dwordx4 v[48:51], v3, s[36:39], 0 offen")
    a("buffer_store_dwordx4 v[52:55], v3, s[32:35], 0 offen")
    for j in range(8):
        a(f"v_mul_f32 v{64+j}, v{40+j}, v{108+j}")
        round_bf16(a, 64 + j, 64 + j)
        a(f"v_add_f32 v{64+j}, v{64+j}, v{32+j}")
    for j in range(4):
        a(f"v_cvt_pk_bf16_f32 v{56+j}, v{64+2*j}, v{65+2*j}")
    a("buffer_store_dwordx4 v[56:59], v3, s[28:31], 0 offen")
    a("""
    v_ashrrev_i32 v73, 31, v72
    v_or_b32 v73, 0x80000000, v73
    v_xor_b32 v73, v73, v72
    v_and_b32 v73, 0xffff0000, v73
    v_sub_u32 v74, 2047, v2
    v_or_b32 v73, v73, v74
    v_lshlrev_b32 v2, 2, v2
    v_cmp_eq_u32 vcc, 0, v1
    s_and_saveexec_b64 s[46:47], vcc
    buffer_store_dword v72, v2, s[40:43], 0 offen
    s_mov_b32 s45, 65536
    buffer_store_dword v73, v2, s[40:43], s45 offen
    """)
    a.label("Lk4_end")
    a("s_endpgm")
    return kernel_desc("post_kernel", 120, sgpr=64)

def top8(a, vlane, srd_r, v0, sidx, skey):
    K = v0; T = v0 + 32; T1 = v0 + 33; T2 = v0 + 34; T3 = v0 + 35
    a(f"v_lshlrev_b32 v{T}, 7, v{vlane}")
    for i in range(8):
        a(f"buffer_load_dwordx4 v[{K+4*i}:{K+4*i+3}], v{T}, s[{srd_r}:{srd_r+3}], 0 offen offset:{16*i}")
    a(f"v_lshlrev_b32 v{T1}, 5, v{vlane}")
    a(f"v_sub_u32 v{T1}, 2047, v{T1}")
    a("s_waitcnt vmcnt(0)")
    for i in range(32):
        a(f"v_ashrrev_i32 v{T2}, 31, v{K+i}")
        a(f"v_or_b32 v{T2}, 0x80000000, v{T2}")
        a(f"v_xor_b32 v{K+i}, v{K+i}, v{T2}")
        a(f"v_and_b32 v{K+i}, 0xffff0000, v{K+i}")
        a(f"v_subrev_u32 v{T2}, {i}, v{T1}")
        a(f"v_or_b32 v{K+i}, v{K+i}, v{T2}")
    for rnd in range(8):
        if rnd == 0:
            a(f"v_max3_u32 v{T}, v{K}, v{K+1}, v{K+2}")
            for i in range(3, 31, 2):
                a(f"v_max3_u32 v{T}, v{T}, v{K+i}, v{K+i+1}")
            a(f"v_max_u32 v{T}, v{T}, v{K+31}")
            wave_allreduce(a, T, T1, T2, op="v_max_u32")
            a("s_nop 0")
            a(f"v_readfirstlane_b32 s{skey}, v{T}")
        else:
            a(f"s_sub_u32 s{sidx+rnd}, s{skey+rnd-1}, 1")
            a(f"v_sub_u32 v{T}, s{sidx+rnd}, v{K}")
            for i in range(1, 31, 2):
                a(f"v_sub_u32 v{T1}, s{sidx+rnd}, v{K+i}")
                a(f"v_sub_u32 v{T2}, s{sidx+rnd}, v{K+i+1}")
                a(f"v_min3_u32 v{T}, v{T}, v{T1}, v{T2}")
            a(f"v_sub_u32 v{T1}, s{sidx+rnd}, v{K+31}")
            a(f"v_min_u32 v{T}, v{T}, v{T1}")
            wave_allreduce(a, T, T1, T2, op="v_min_u32")
            a("s_nop 0")
            a(f"v_readfirstlane_b32 s{skey+rnd}, v{T}")
            a("s_nop 3")
            a(f"s_sub_u32 s{skey+rnd}, s{sidx+rnd}, s{skey+rnd}")
    a("s_nop 3")
    for rnd in range(8):
        a(f"s_and_b32 s{sidx+rnd}, s{skey+rnd}, 0x7ff")
        a(f"s_sub_u32 s{sidx+rnd}, 2047, s{sidx+rnd}")

def gen_k5(a):
    kernel_begin(a, "moe1_kernel")
    a("""
    s_cmp_ge_u32 s2, 56
    s_cbranch_scc1 Lk5_end
    s_load_dwordx2 s[4:5], s[0:1], 56     ; w_gate
    s_load_dwordx2 s[6:7], s[0:1], 64     ; w_up
    s_load_dwordx2 s[8:9], s[0:1], 112    ; ws
    v_and_b32 v1, 63, v0
    s_waitcnt lgkmcnt(0)
    """)
    srd(a, 12, 4, 512 * 1792 * 2)
    srd(a, 16, 6, 512 * 1792 * 2)
    srd(a, 20, 8, 2048 * 4, WS_R)
    srd(a, 24, 8, 2048 * 512 * 2, WS_H2)
    srd(a, 28, 8, 1792 * 8 * 2, WS_ACT)
    srd(a, 32, 8, 64, WS_IDX)
    a("""
    v_and_b32 v2, 15, v0
    v_lshrrev_b32 v3, 4, v0
    s_mov_b32 s36, 114688
    v_mul_lo_u32 v4, v3, s36
    v_lshlrev_b32 v5, 2, v2
    v_add_u32 v4, v4, v5
    s_lshl_b32 s37, s2, 6
    """)
    for kk in range(32):
        a(f"buffer_load_dword v{128+kk}, v4, s[12:15], s37 offen")
        a(f"buffer_load_dword v{160+kk}, v4, s[16:19], s37 offen")
        if kk < 31: a("s_add_u32 s37, s37, 3584")
    top8(a, 1, 20, 8, 40, 48)
    a("""
    v_lshrrev_b32 v5, 5, v0
    v_and_b32 v6, 31, v0
    """)
    a("v_mov_b32 v7, s40")
    for t in range(1, 8):
        a(f"v_cmp_eq_u32 vcc, {t}, v5")
        a(f"v_mov_b32 v44, s{40+t}")
        a("s_nop 0")
        a(f"v_cndmask_b32 v7, v7, v44, vcc")
    a("""
    v_lshlrev_b32 v7, 10, v7
    v_lshlrev_b32 v44, 5, v6
    v_add_u32 v7, v7, v44
    buffer_load_dwordx4 v[8:11], v7, s[24:27], 0 offen
    buffer_load_dwordx4 v[12:15], v7, s[24:27], 0 offen offset:16
    v_lshlrev_b32 v44, 9, v6          ; kq*16*32
    v_lshlrev_b32 v45, 2, v5
    v_add_u32 v44, v44, v45
    s_waitcnt vmcnt(0)
    """)
    for j in range(8):
        unpack_bf16(a, 16, 17, 8 + j)
        a(f"ds_write_b32 v44, v16 offset:{(2*j)*32}")
        a(f"ds_write_b32 v44, v17 offset:{(2*j+1)*32}")
    a("""
    s_cmp_lg_u32 s2, 0
    s_cbranch_scc1 Lk5_noidx
    v_cmp_gt_u32 vcc, 8, v0
    s_and_saveexec_b64 s[56:57], vcc
    s_cbranch_execz Lk5_noidx2
    """)
    a("v_mov_b32 v7, s40")
    for t in range(1, 8):
        a(f"v_cmp_eq_u32 vcc, {t}, v0")
        a(f"v_mov_b32 v45, s{40+t}")
        a("s_nop 0")
        a(f"v_cndmask_b32 v7, v7, v45, vcc")
    a(f"""
    v_lshlrev_b32 v45, 2, v7
    buffer_load_dword v46, v45, s[20:23], 0 offen
    v_lshlrev_b32 v45, 2, v0
    buffer_store_dword v7, v45, s[32:35], 0 offen
    s_waitcnt vmcnt(0)
    s_mov_b32 s36, {LOG2E:#x}
    v_mul_f32 v46, s36, v46
    v_exp_f32 v46, -v46
    s_nop 0
    v_add_f32 v46, 1.0, v46
    v_rcp_f32 v46, v46
    s_nop 0
    """)
    round_bf16(a, 46, 46)
    a("buffer_store_dword v46, v45, s[32:35], 0 offen offset:32")
    a.label("Lk5_noidx2")
    a("s_mov_b64 exec, -1")
    a.label("Lk5_noidx")
    a("""
    s_waitcnt lgkmcnt(0)
    s_barrier
    v_lshlrev_b32 v44, 10, v3         ; ks*32*32
    """)
    for i in range(32):
        a(f"v_mov_b32 v{64+i}, 0")
    for kk in range(32):
        xb = 8 + 8 * (kk % 2)
        if kk == 0:
            a(f"ds_read_b128 v[{xb}:{xb+3}], v44")
            a(f"ds_read_b128 v[{xb+4}:{xb+7}], v44 offset:16")
        if kk + 1 < 32:
            xn = 8 + 8 * ((kk + 1) % 2)
            a(f"ds_read_b128 v[{xn}:{xn+3}], v44 offset:{(kk+1)*32}")
            a(f"ds_read_b128 v[{xn+4}:{xn+7}], v44 offset:{(kk+1)*32+16}")
            a("s_waitcnt lgkmcnt(2)")
        else:
            a("s_waitcnt lgkmcnt(0)")
        unpack_bf16(a, 24, 25, 128 + kk)
        unpack_bf16(a, 26, 27, 160 + kk)
        for t in range(8):
            for c in range(4):
                a(f"v_fmac_f32 v{64+4*t+c}, v{xb+t}, v{24+c}")
    a("""
    v_lshlrev_b32 v44, 11, v3
    v_lshlrev_b32 v45, 4, v2
    v_add_u32 v44, v44, v45
    """)
    for t in range(8):
        a(f"ds_write_b128 v44, v[{64+4*t}:{67+4*t}] offset:{16384 + t*256}")
    a("""
    s_waitcnt lgkmcnt(0)
    s_barrier
    v_lshlrev_b32 v44, 8, v5
    v_lshrrev_b32 v45, 1, v6
    v_lshlrev_b32 v45, 4, v45
    v_add_u32 v44, v44, v45
    v_and_b32 v45, 1, v6
    v_lshlrev_b32 v45, 2, v45
    v_add_u32 v44, v44, v45
    """)
    for ks in range(16):
        a(f"ds_read_b32 v{64+ks}, v44 offset:{16384 + ks*2048}")
        a(f"ds_read_b32 v{80+ks}, v44 offset:{16384 + ks*2048 + 8}")
    a("s_waitcnt lgkmcnt(0)")
    for ks in range(1, 16):
        a(f"v_add_f32 v64, v64, v{64+ks}")
        a(f"v_add_f32 v80, v80, v{80+ks}")
    round_bf16(a, 64, 64)
    round_bf16(a, 80, 80)
    a(f"""
    s_mov_b32 s36, {LOG2E:#x}
    v_mul_f32 v65, s36, v64
    v_exp_f32 v65, -v65
    s_nop 0
    v_add_f32 v65, 1.0, v65
    v_rcp_f32 v65, v65
    s_nop 0
    v_mul_f32 v64, v64, v65
    """)
    round_bf16(a, 64, 64)
    a("""
    v_mul_f32 v64, v64, v80
    v_cvt_pk_bf16_f32 v64, v64, v64
    v_lshlrev_b32 v44, 4, v6
    v_lshlrev_b32 v45, 1, v5
    v_add_u32 v44, v44, v45
    s_lshl_b32 s37, s2, 9
    buffer_store_short v64, v44, s[28:31], s37 offen
    """)
    a.label("Lk5_end")
    a("s_endpgm")
    return kernel_desc("moe1_kernel", 192, sgpr=64)

def gen_k6(a):
    kernel_begin(a, "moe2_kernel")
    a("""
    s_cmp_ge_u32 s2, 32
    s_cbranch_scc1 Lk6_end
    s_load_dwordx2 s[4:5], s[0:1], 72     ; w_down
    s_load_dwordx2 s[8:9], s[0:1], 112    ; ws
    s_load_dwordx2 s[10:11], s[0:1], 96   ; out
    v_and_b32 v2, 7, v0               ; cp
    v_lshrrev_b32 v3, 3, v0
    s_mov_b32 s36, 57344
    v_mul_lo_u32 v4, v3, s36          ; ks*56*1024
    v_lshlrev_b32 v5, 2, v2
    v_add_u32 v4, v4, v5
    s_mov_b32 s36, 896
    v_mul_lo_u32 v6, v3, s36          ; ks*56*16
    s_lshl_b32 s37, s2, 5
    s_waitcnt lgkmcnt(0)
    """)
    srd(a, 12, 4, 1792 * 512 * 2)
    srd(a, 16, 8, 1792 * 8 * 2, WS_ACT)
    srd(a, 20, 8, 64, WS_IDX)
    srd(a, 24, 8, 2048 * 512 * 2, WS_H2)
    srd(a, 28, 8, 2048 * 512 * 2, WS_X2)
    srd(a, 32, 10, 2048 * 512 * 2)
    srd(a, 40, 8, 3072 * 4, WS_MOD)
    for i in range(16):
        a(f"v_mov_b32 v{64+i}, 0")
    for half in range(2):
        for kk in range(28):
            f = half * 28 + kk
            a(f"buffer_load_dword v{96+kk}, v4, s[12:15], s37 offen")
            a("s_add_u32 s37, s37, 1024")
            a(f"buffer_load_dwordx4 v[{128+4*kk}:{131+4*kk}], v6, s[16:19], 0 offen offset:{f*16}")
        for kk in range(28):
            a(f"s_waitcnt vmcnt({2*(27-kk)})")
            unpack_bf16(a, 8, 9, 96 + kk)
            for j in range(4):
                unpack_bf16(a, 10, 11, 128 + 4 * kk + j)
                a(f"v_fmac_f32 v{64+4*j}, v10, v8")
                a(f"v_fmac_f32 v{65+4*j}, v10, v9")
                a(f"v_fmac_f32 v{66+4*j}, v11, v8")
                a(f"v_fmac_f32 v{67+4*j}, v11, v9")
    a("""
    v_lshlrev_b32 v8, 9, v3
    v_lshlrev_b32 v9, 6, v2
    v_add_u32 v8, v8, v9
    """)
    for j in range(4):
        a(f"ds_write_b128 v8, v[{64+4*j}:{67+4*j}] offset:{16*j}")
    a("""
    s_waitcnt lgkmcnt(0)
    s_barrier
    v_cmp_gt_u32 vcc, 128, v0
    s_and_saveexec_b64 s[44:45], vcc
    s_cbranch_execz Lk6_end
    v_lshrrev_b32 v2, 4, v0           ; tok
    v_and_b32 v3, 15, v0              ; col
    v_lshrrev_b32 v8, 1, v3
    v_lshlrev_b32 v8, 6, v8
    v_lshlrev_b32 v9, 3, v2
    v_add_u32 v8, v8, v9
    v_and_b32 v9, 1, v3
    v_lshlrev_b32 v9, 2, v9
    v_add_u32 v8, v8, v9
    v_lshlrev_b32 v9, 2, v2
    buffer_load_dword v10, v9, s[20:23], 0 offen            ; idx
    buffer_load_dword v11, v9, s[20:23], 0 offen offset:32  ; rsel
    s_lshl_b32 s37, s2, 4
    v_add_u32 v12, s37, v3
    v_lshlrev_b32 v13, 2, v12
    s_mov_b32 s36, 10240
    buffer_load_dword v14, v13, s[40:43], s36 offen         ; gb
    """)
    for ks in range(32):
        a(f"ds_read_b32 v{64+ks}, v8 offset:{ks*512}")
    a("""
    s_waitcnt vmcnt(0)
    v_lshlrev_b32 v10, 10, v10
    v_lshlrev_b32 v13, 1, v12
    v_add_u32 v10, v10, v13
    buffer_load_ushort v15, v10, s[24:27], 0 offen          ; h2
    buffer_load_ushort v16, v10, s[28:31], 0 offen          ; x2
    s_waitcnt lgkmcnt(0)
    """)
    for ks in range(1, 32):
        a(f"v_add_f32 v64, v64, v{64+ks}")
    round_bf16(a, 64, 64)
    a("v_mul_f32 v64, v64, v11")
    round_bf16(a, 64, 64)
    a("""
    s_waitcnt vmcnt(0)
    v_lshlrev_b32 v15, 16, v15
    v_lshlrev_b32 v16, 16, v16
    v_add_f32 v64, v64, v15
    """)
    round_bf16(a, 64, 64)
    a("v_mul_f32 v64, v64, v14")
    round_bf16(a, 64, 64)
    a("""
    v_add_f32 v64, v64, v16
    v_cvt_pk_bf16_f32 v64, v64, v64
    buffer_store_short v64, v10, s[32:35], 0 offen
    """)
    a.label("Lk6_end")
    a("s_endpgm")
    return kernel_desc("moe2_kernel", 240, sgpr=64)

def rest_kernels():
    return [(gen_k3, "oproj_kernel", 256, 256, 131072),
            (gen_k4, "post_kernel", 512, 256, 0),
            (gen_moe2.gen_moe, "moe_kernel", 56, 512, 107520)]
```

```python
import sys
from genlib import *
from gen_small import *
from gen_attn import *

HEADER = open("adaLN_cond__mha_block_cached__moe_arch_mod__prompt.s.ref").read().split("; Override launch")[0]

import os, re
def add_timeline(txt, names):
    for ki, n in enumerate(names):
        txt = txt.replace(f"{n}:\n", f"{n}:\n    s_memrealtime s[98:99]\n    s_load_dwordx2 s[96:97], s[0:1], 112\n    s_mov_b32 s95, s2\n    s_waitcnt lgkmcnt(0)\n", 1)
    def repl(m):
        return m.group(0)
    for ki, n in enumerate(names):
        pass
    parts = re.split(r"(Lk\d_end:\n    s_endpgm\n)", txt)
    out = []
    ki = 0
    for p in parts:
        m = re.match(r"(Lk\d_end):\n    s_endpgm\n", p)
        if m:
            code = f"""{m.group(1)}:
    s_mov_b64 exec, 1
    s_waitcnt vmcnt(0) lgkmcnt(0)
    s_memrealtime s[100:101]
    s_add_u32 s84, s96, {(96 << 20) + ki * 65536}
    s_addc_u32 s85, s97, 0
    s_mov_b32 s86, 65536
    s_mov_b32 s87, 0x00020000
    s_waitcnt lgkmcnt(0)
    v_mov_b32 v4, s98
    v_mov_b32 v5, s99
    v_mov_b32 v6, s100
    v_mov_b32 v7, s101
    s_lshl_b32 s95, s95, 4
    v_mov_b32 v3, 0
    buffer_store_dwordx4 v[4:7], v3, s[84:87], s95 offen
    s_endpgm
"""
            out.append(code); ki += 1
        else:
            out.append(p)
    return "".join(out)

def build(kernels):
    a = Asm()
    descs = []
    launches = []
    for (fn, name, grid, block, lds) in kernels:
        launches.append(f"; @launch kernel={name} grid=({grid},1,1) block=({block},1,1) lds={lds}")
    out = HEADER + "\n".join(launches) + "\n"
    out += '.amdgcn_target "amdgcn-amd-amdhsa--gfx950"\n.text\n'
    for (fn, name, grid, block, lds) in kernels:
        descs.append(fn(a))
    txt = a.text()
    if 'tl' in os.environ.get('XF', '').split(','):
        txt = add_timeline(txt, [k[1] for k in kernels])
    out += txt
    if 'tl' in os.environ.get('XF', '').split(','):
        descs = [re.sub(r"next_free_sgpr \d+", "next_free_sgpr 102", d) for d in descs]
    out += '.section .rodata,"a"\n' + "".join(descs)
    return out

if __name__ == "__main__":
    from gen_prep2 import gen_prep2
    ks = [(gen_prep2, "prep_kernel", 176, 256, 8192),
          (gen_k2, "attn_kernel", 256, 512, 131072)]
    if 'a2' in os.environ.get('XF', '').split(','):
        import gen_attn2
        ks[-1] = (gen_attn2.gen_k2, "attn_kernel", 256, 256, 131072)
    try:
        from gen_rest import rest_kernels
        ks += rest_kernels()
    except ImportError as e:
        print("no rest", e)
    open(sys.argv[1] if len(sys.argv) > 1 else "k.s", "w").write(build(ks))
```

```python
from genlib import *
from gen_small import *
import struct, os
XF = set(os.environ.get('XF', '').split(','))

def f32hex(x):
    return struct.unpack("<I", struct.pack("<f", x))[0]

SCALE_C = (128 ** -0.5) * 1.4426950408889634
THR = 5.5 if 'novalu' not in XF else 1e30

V_KA = 1
V_VA = 9
V_KDMA = 13
V_VDMA = 14
V_MTHR = 15
V_NMC = 16
V_F = 17
V_L = 18
V_M = 143
V_MX = 141
USE_PK = False
V_T = 20
V_RING = 24
NRING = 8
V_P = 56
V_S = [72, 104]
V_PA = 136
V_WDMA = 140
V_HOFF = 141
V_LANE16 = 142
V_HX = 144
A_Q = 0
A_O = 32
NVGPR = 160
NAGPR = 96

KSLOT = [i * 16384 for i in range(4)]
VSLOT = [65536 + i * 16384 for i in range(4)]

S_HEAD = 3; S_QB = 4; S_W = 5; S_W1K = 6
S_SRDK = 8; S_SRDV = 12; S_SRDW = 16; S_SRDH = 20; S_SRDO = 24
S_KOFF = 28; S_VOFF = 29; S_T0 = 30; S_T1 = 31; S_CNT = 32; S_C = 33; S_T2 = 34; S_SCALE = 46; S_L2E = 44; S_FLAG = 35

def ring(g):
    b = V_RING + 4 * (g % NRING)
    return b

def dma(a, srdreg, voff, soff_sgpr, extra, ldsaddr):
    a(f"s_add_u32 m0, s{S_W1K}, {ldsaddr}")
    if extra:
        a(f"s_add_u32 s{S_T0}, s{soff_sgpr}, {extra}")
        so = S_T0
    else:
        a("s_nop 0")
        so = soff_sgpr
    a(f"buffer_load_dwordx4 v{voff}, s[{srdreg}:{srdreg+3}], s{so} offen lds")

def dma_k(a, slot):
    dma(a, S_SRDK, V_KDMA, S_KOFF, 0, KSLOT[slot])
    dma(a, S_SRDK, V_KDMA, S_KOFF, 8192, KSLOT[slot] + 8192)
    a(f"s_add_u32 s{S_KOFF}, s{S_KOFF}, 16384")

def dma_v(a, slot):
    dma(a, S_SRDV, V_VDMA, S_VOFF, 0, VSLOT[slot])
    dma(a, S_SRDV, V_VDMA, S_VOFF, 8192, VSLOT[slot] + 8192)
    a(f"s_add_u32 s{S_VOFF}, s{S_VOFF}, 16384")

class Stream:
    pass

def kread(g, slot, kb, ks):
    if 'nolds' in XF: return []
    if 'halflds' in XF and (g & 1): return []
    b = ring(g)
    return [f"ds_read_b128 v[{b}:{b+3}], v{V_KA+ks} offset:{KSLOT[slot] + kb*8192}"]

def vread(g, slot, s, t):
    if 'nolds' in XF: return []
    if 'halflds' in XF and (g & 1): return []
    b = ring(g)
    off = VSLOT[slot] - 65536 + s * 4096
    return [f"ds_read_b64_tr_b16 v[{b}:{b+1}], v{V_VA+t} offset:{off}",
            f"ds_read_b64_tr_b16 v[{b+2}:{b+3}], v{V_VA+t} offset:{off+2048}"]

def wread(g, ldsbase, s, t):
    b = ring(g)
    off = ldsbase + s * 4096
    ar = V_PA + t
    if off >= 65536:
        off -= 65536; ar = 15 + t
    return [f"ds_read_b64_tr_b16 v[{b}:{b+1}], v{ar} offset:{off}",
            f"ds_read_b64_tr_b16 v[{b+2}:{b+3}], v{ar} offset:{off+1024}"]

def hfrag(ks):
    if ks < 16: return f"a[{A_O+4*ks}:{A_O+4*ks+3}]"
    if ks < 24: return f"a[{A_Q+4*(ks-16)}:{A_Q+4*(ks-16)+3}]"
    if ks < 28: return f"v[{V_P+4*(ks-24)}:{V_P+4*(ks-24)+3}]"
    return f"v[{V_HX+4*(ks-28)}:{V_HX+4*(ks-28)+3}]"

def emit_seq(a, items, pre_issued, fillers, tail_reads):
    D = NRING
    allreads = [r for (_, r) in items] + tail_reads
    n = len(items)
    issued = pre_issued
    while issued < min(D, len(allreads)):
        for r in allreads[issued]: a(r)
        issued += 1
    for i in range(n):
        cnt = sum(len(allreads[k]) for k in range(i + 1, issued))
        if 'nowait' not in XF: a(f"s_waitcnt lgkmcnt({cnt})")
        if 'm16' in XF and 'v_mfma_f32_32x32x16' in items[i][0]:
            import re
            m = re.match(r"v_mfma_f32_32x32x16_bf16 ([av])\[(\d+):\d+\], (\S+), (\S+), (.*)", items[i][0])
            ty, d0, A, B, C = m.group(1), int(m.group(2)), m.group(3), m.group(4), m.group(5)
            for h in range(2):
                dd = d0 + 4 * h
                cc = "0" if C == "0" else f"{ty}[{dd}:{dd+3}]"
                a(f"v_mfma_f32_16x16x32_bf16 {ty}[{dd}:{dd+3}], {A} {B} {cc}")
        else:
            a(items[i][0])
        if issued < len(allreads) and issued == i + D:
            for r in allreads[issued]: a(r)
            issued += 1
        for f in fillers.get(i, []):
            a(f)
    return issued - n

def gen_k2(a):
    kernel_begin(a, "attn_kernel")
    a(f"""
    s_cmp_ge_u32 s2, 256
    s_cbranch_scc1 Lk2_end
    s_load_dwordx2 s[36:37], s[0:1], 8      ; K
    s_load_dwordx2 s[38:39], s[0:1], 16     ; V
    s_load_dwordx2 s[40:41], s[0:1], 24     ; wq
    s_load_dwordx2 s[42:43], s[0:1], 112    ; ws
    s_and_b32 s{S_HEAD}, s2, 7
    s_lshr_b32 s{S_T0}, s2, 6
    s_lshl_b32 s{S_T0}, s{S_T0}, 3
    s_or_b32 s{S_HEAD}, s{S_HEAD}, s{S_T0}
    s_lshr_b32 s{S_QB}, s2, 3
    s_and_b32 s{S_QB}, s{S_QB}, 7
    v_lshrrev_b32 v1, 6, v0
    s_nop 0
    v_readfirstlane_b32 s{S_W}, v1
    v_and_b32 v0, 63, v0
    s_lshl_b32 s{S_W1K}, s{S_W}, 10
    s_mov_b32 s{S_C}, {f32hex(SCALE_C):#x}
    s_mov_b32 s{S_SCALE}, {f32hex(128 ** -0.5):#x}
    s_mov_b32 s{S_L2E}, {f32hex(1.4426950408889634):#x}
    """)
    if 'stamp' in XF:
        a("s_memtime s[48:49]")
    if 'stamp' in XF: a("s_memrealtime s[60:61]")
    a(f"""
    v_lshlrev_b32 v{V_LANE16}, 4, v0
    v_lshrrev_b32 v20, 4, v0            ; i>>4 (0..3)
    v_and_b32 v21, 15, v0               ; i&15
    s_lshl_b32 s{S_T0}, s{S_W}, 2
    v_add_u32 v22, s{S_T0}, v20
    v_and_b32 v22, 15, v22
    v_xor_b32 v22, v22, v21
    v_lshlrev_b32 v22, 4, v22
    v_lshlrev_b32 v23, 8, v20
    v_add_u32 v22, v22, v23
    v_add_u32 v{V_KDMA}, s{S_W1K}, v22
    v_lshlrev_b32 v22, 2, v20
    v_xor_b32 v22, v22, v21
    v_lshlrev_b32 v22, 4, v22
    v_add_u32 v{V_VDMA}, v22, v23
    v_add_u32 v{V_VDMA}, s{S_W1K}, v{V_VDMA}
    v_lshlrev_b32 v23, 13, v20
    v_add_u32 v{V_WDMA}, v22, v23
    s_lshl_b32 s{S_T0}, s{S_W}, 15
    v_add_u32 v{V_WDMA}, s{S_T0}, v{V_WDMA}
    v_and_b32 v20, 31, v0
    v_lshlrev_b32 v20, 8, v20
    v_lshrrev_b32 v22, 5, v0
    v_xor_b32 v23, v22, v21
    v_lshlrev_b32 v23, 4, v23
    v_add_u32 v{V_KA}, v20, v23
    """)
    for ks in range(1, 8):
        a(f"v_xor_b32 v{V_KA+ks}, {ks*32}, v{V_KA}")
    a(f"""
    v_lshrrev_b32 v20, 2, v21           ; r
    v_lshrrev_b32 v23, 4, v0
    v_and_b32 v23, 1, v23
    v_lshlrev_b32 v23, 5, v23           ; 32g
    v_and_b32 v21, 3, v0
    v_lshlrev_b32 v21, 3, v21           ; 8c
    v_add_u32 v21, v21, v23             ; 32g+8c
    v_lshlrev_b32 v23, 8, v20           ; r*256
    v_add_u32 v21, v21, v23             ; r*256+32g+8c
    v_lshlrev_b32 v23, 10, v22          ; u*1024
    """)
    for t in range(4):
        a(f"v_xor_b32 v{V_VA+t}, {t}, v20")
        a(f"v_lshlrev_b32 v{V_VA+t}, 6, v{V_VA+t}")
        a(f"v_add_u32 v{V_VA+t}, v{V_VA+t}, v21")
        a(f"v_add_u32 v{V_VA+t}, v{V_VA+t}, v23")
        a(f"v_add_u32 v{V_PA+t}, v{V_VA+t}, v23")
        a(f"v_add_u32 v{V_VA+t}, 0x10000, v{V_VA+t}")
        a(f"v_add_u32 v{15+t}, 0x10000, v{V_PA+t}")
    a("s_waitcnt lgkmcnt(0)")
    a(f"""
    s_lshl_b32 s{S_T0}, s{S_HEAD}, 19
    s_add_u32 s{S_SRDK}, s36, s{S_T0}
    s_addc_u32 s{S_SRDK+1}, s37, 0
    s_mov_b32 s{S_SRDK+2}, 0x80000
    s_mov_b32 s{S_SRDK+3}, 0x00020000
    s_add_u32 s{S_SRDV}, s38, s{S_T0}
    s_addc_u32 s{S_SRDV+1}, s39, 0
    s_mov_b32 s{S_SRDV+2}, 0x80000
    s_mov_b32 s{S_SRDV+3}, 0x00020000
    s_lshl_b32 s{S_T0}, s{S_HEAD}, 8
    s_add_u32 s{S_SRDW}, s40, s{S_T0}
    s_addc_u32 s{S_SRDW+1}, s41, 0
    s_sub_u32 s{S_SRDW+2}, 0x400000, s{S_T0}
    s_mov_b32 s{S_SRDW+3}, 0x00020000
    """)
    srd(a, S_SRDH, 42, 2048 * 512 * 2, WS_H1F)
    srd(a, S_SRDO, 42, 2048 * 4096 * 2, WS_OF)
    wslot = [KSLOT[0], KSLOT[1], KSLOT[2], VSLOT[0], VSLOT[1], KSLOT[3], VSLOT[2], VSLOT[3]]
    a(f"s_mov_b32 s{S_T1}, 0")
    if 'wqlin' in XF:
        a(f"s_lshl_b32 s{S_T1}, s{S_HEAD}, 16")
    def dma_w(c):
        if 'wqlin' in XF:
            dma(a, S_SRDW, V_VDMA, S_T1, 0, wslot[c])
            dma(a, S_SRDW, V_VDMA, S_T1, 8192, wslot[c] + 8192)
            a(f"s_add_u32 s{S_T1}, s{S_T1}, 16384")
            return
        dma(a, S_SRDW, V_WDMA, S_T1, 0, wslot[c])
        dma(a, S_SRDW, V_WDMA, S_T1, 262144, wslot[c] + 8192)
        a(f"s_add_u32 s{S_T1}, s{S_T1}, 524288")
    a(f"""
    s_lshl_b32 s{S_T2}, s{S_QB}, 3
    s_add_u32 s{S_T2}, s{S_T2}, s{S_W}
    s_lshl_b32 s{S_T2}, s{S_T2}, 15
    """)
    def chunk_loads(c):
        groups = []
        a2 = Asm()
        sav = a.lines; a.lines = a2.lines
        dma_w(c)
        a.lines = sav
        L = [l.strip() for l in a2.lines]
        groups.append(L[0:3]); groups.append(L[3:])
        for ks in range(4 * c, 4 * c + 4):
            g_ = [f"buffer_load_dwordx4 {hfrag(ks)}, v{V_LANE16}, s[{S_SRDH}:{S_SRDH+3}], s{S_T2} offen offset:{(ks%4)*1024}"]
            if ks % 4 == 3: g_.append(f"s_add_u32 s{S_T2}, s{S_T2}, 4096")
            groups.append(g_)
        return groups
    for c in range(3):
        for g_ in chunk_loads(c):
            for t in g_: a(t)
    a(f"s_mov_b32 s{S_KOFF}, 0")
    a(f"s_mov_b32 s{S_VOFF}, 0")
    if 'stamp' in XF:
        a("s_memtime s[50:51]")
    kvq = [('k', 0), ('k', 1), ('k', 2), ('v', 0), ('v', 1), ('k', 3), ('v', 2)]
    a("s_waitcnt vmcnt(6)")
    a("s_barrier")
    g = 0
    items = []
    fill = {}
    for c in range(8):
        for s_ in range(4):
            for t in range(4):
                d = V_S[0] + 16 * t
                first = (c == 0 and s_ == 0)
                csrc = "0" if first else f"v[{d}:{d+15}]"
                b = ring(g)
                items.append((f"v_mfma_f32_32x32x16_bf16 v[{d}:{d+15}], v[{b}:{b+3}], {hfrag(4*c+s_)}, {csrc}",
                              wread(g, wslot[c], s_, t)))
                g += 1
        nops = 0
        pos = 16 * c
        if c >= 1:
            a2 = Asm()
            kind, sl = kvq[c - 1]
            (dma_k if kind == 'k' else dma_v)(a2, sl)
            L = [l.strip() for l in a2.lines]
            fill[pos] = L[0:3]; fill[pos + 1] = L[3:]
            nops += 2
        if c + 3 < 8:
            for k, g_ in enumerate(chunk_loads(c + 3)):
                fill[pos + 2 + 2 * k] = g_
            nops += 6
        if c < 7:
            fill[pos + 15] = [f"s_waitcnt vmcnt({nops})", "s_barrier"]
    emit_seq(a, items, 0, fill, [])
    if 'stamp' in XF:
        a("s_memtime s[52:53]")
    a("s_nop 15")
    for t in range(4):
        for hh in range(2):
            base = V_S[0] + 16 * t + 8 * hh
            a(f"v_cvt_pk_bf16_f32 v20, v{base}, v{base+1}")
            a(f"v_cvt_pk_bf16_f32 v21, v{base+2}, v{base+3}")
            a(f"v_cvt_pk_bf16_f32 v22, v{base+4}, v{base+5}")
            a(f"v_cvt_pk_bf16_f32 v23, v{base+6}, v{base+7}")
            a("s_nop 1")
            a("v_permlane32_swap_b32 v20, v22")
            a("v_permlane32_swap_b32 v21, v23")
            a("s_nop 1")
            ks = 2 * t + hh
            for x in range(4):
                a(f"v_accvgpr_write_b32 a{A_Q+4*ks+x}, v{20+x}")
    for i in range(64):
        a(f"v_accvgpr_write_b32 a{A_O+i}, 0")
    a(f"""
    v_mov_b32 v{V_M}, 0xff800000
    v_mov_b32 v{V_MTHR}, 0xff800000
    v_mov_b32 v{V_L}, 0
    v_mov_b32 v{V_L+1}, 0
    v_mov_b32 v{V_NMC}, 0
    s_waitcnt vmcnt(10)
    s_barrier
    """)

    gctr = [0]
    def qk_items(tile, sdst):
        items = []
        for kb in range(2):
            for ks in range(8):
                d = V_S[sdst] + 16 * kb
                csrc = "0" if ks == 0 else f"v[{d}:{d+15}]"
                gg = gctr[0]; gctr[0] += 1
                b = ring(gg)
                items.append((f"v_mfma_f32_32x32x16_bf16 v[{d}:{d+15}], v[{b}:{b+3}], a[{A_Q+4*ks}:{A_Q+4*ks+3}], {csrc}",
                              kread(gg, tile % 4, kb, ks)))
        return items
    def pv_items(tile):
        items = []
        for s in range(4):
            for t in range(4):
                d = A_O + 16 * t
                gg = gctr[0]; gctr[0] += 1
                b = ring(gg)
                items.append((f"v_mfma_f32_32x32x16_bf16 a[{d}:{d+15}], v[{b}:{b+3}], v[{V_P+4*s}:{V_P+4*s+3}], a[{d}:{d+15}]",
                              vread(gg, tile % 4, s, t)))
        return items
    def peek_k_reads(tile):
        save = gctr[0]
        it = qk_items(tile, 0)
        gctr[0] = save
        return [r for (_, r) in it[:NRING]]

    def prep_ops(sreg, pairs):
        b = V_S[sreg]
        ops = []
        n = len(pairs)
        for k in range(n + 3):
            if k < n:
                i = pairs[k]
                ops.append((f"v_cvt_pk_bf16_f32 v{b+2*i}, 0, v{b+2*i}", 1))
                ops.append((f"v_cvt_pk_bf16_f32 v{b+2*i+1}, 0, v{b+2*i+1}", 1))
            if 0 <= k - 1 < n:
                i = pairs[k - 1]
                if USE_PK:
                    ops.append((f"v_pk_mul_f32 v[{b+2*i}:{b+2*i+1}], v[{b+2*i}:{b+2*i+1}], s[{S_SCALE}:{S_SCALE+1}] op_sel_hi:[1,0]", 1))
                else:
                    ops.append((f"v_mul_f32 v{b+2*i}, s{S_SCALE}, v{b+2*i}", 1))
                    ops.append((f"v_mul_f32 v{b+2*i+1}, s{S_SCALE}, v{b+2*i+1}", 1))
            if 0 <= k - 2 < n:
                i = pairs[k - 2]
                ops.append((f"v_cvt_pk_bf16_f32 v{b+2*i}, 0, v{b+2*i}", 1))
                ops.append((f"v_cvt_pk_bf16_f32 v{b+2*i+1}, 0, v{b+2*i+1}", 1))
            if 0 <= k - 3 < n:
                i = pairs[k - 3]
                if i == 0:
                    ops.append((f"v_max_f32 v{V_MX}, v{b}, v{b+1}", 1))
                else:
                    ops.append((f"v_max3_f32 v{V_MX}, v{V_MX}, v{b+2*i}, v{b+2*i+1}", 1))
        return ops

    def post_ops(sreg):
        b = V_S[sreg]
        ops = []
        for k in range(16 + 2):
            if k < 16:
                i = k
                if USE_PK:
                    ops.append((f"v_pk_fma_f32 v[{b+2*i}:{b+2*i+1}], v[{b+2*i}:{b+2*i+1}], s[{S_L2E}:{S_L2E+1}], v[{V_NMC}:{V_NMC+1}] op_sel_hi:[1,0,0]", 1))
                else:
                    ops.append((f"v_fma_f32 v{b+2*i}, v{b+2*i}, s{S_L2E}, v{V_NMC}", 1))
                    ops.append((f"v_fma_f32 v{b+2*i+1}, v{b+2*i+1}, s{S_L2E}, v{V_NMC}", 1))
            if 0 <= k - 1 < 16:
                i = k - 1
                ops.append((f"v_exp_f32 v{b+2*i}, v{b+2*i}", 2))
                ops.append((f"v_exp_f32 v{b+2*i+1}, v{b+2*i+1}", 2))
            if 0 <= k - 2 < 16:
                i = k - 2
                if USE_PK:
                    ops.append((f"v_pk_add_f32 v[{V_L}:{V_L+1}], v[{V_L}:{V_L+1}], v[{b+2*i}:{b+2*i+1}]", 1))
                else:
                    ops.append((f"v_add_f32 v{V_L}, v{V_L}, v{b+2*i}", 1))
                    ops.append((f"v_add_f32 v{V_L+1}, v{V_L+1}, v{b+2*i+1}", 1))
                ops.append((f"v_cvt_pk_bf16_f32 v{V_P+i}, v{b+2*i}, v{b+2*i+1}", 1))
        return ops

    def spread(ops, nslots):
        if 'novalu' in XF: ops = [(t, w) for (t, w) in ops if 'v_max' in t]
        if 'noexp' in XF: ops = [(t.replace('v_exp_f32', 'v_mov_b32'), w) for (t, w) in ops]
        if 'nocvt' in XF: ops = [(t, w) for (t, w) in ops if not ('v_cvt_pk' in t and ', 0, ' in t)]
        tot = sum(w for _, w in ops)
        out = [[] for _ in range(nslots)]
        acc = 0
        for t, w in ops:
            k = min(nslots - 1, int((acc + w / 2) * nslots / tot))
            out[k].append(t)
            acc += w
        return out

    NPOST_B = 6
    PREP0 = 10

    def rare1(lbl_rare, lbl_back):
        r = [f"{lbl_rare}:"]
        body = f"""
        v_max_f32 v{V_MX}, v{V_MX}, v{V_M}
        v_mov_b32 v20, v{V_MX}
        v_mov_b32 v21, v{V_MX}
        s_nop 1
        v_permlane32_swap_b32 v20, v21
        s_nop 1
        v_max_f32 v{V_MX}, v20, v21
        v_sub_f32 v20, v{V_M}, v{V_MX}
        v_mul_f32 v20, s{S_L2E}, v20
        v_exp_f32 v{V_F}, v20
        v_mov_b32 v{V_M}, v{V_MX}
        v_mul_f32 v{V_NMC}, s{S_L2E}, v{V_MX}
        v_sub_f32 v{V_NMC}, 0, v{V_NMC}
        v_add_f32 v{V_MTHR}, {f32hex(THR):#x}, v{V_MX}
        v_mul_f32 v{V_L}, v{V_L}, v{V_F}
        v_mul_f32 v{V_L+1}, v{V_L+1}, v{V_F}
        s_mov_b32 s{S_FLAG}, 1
        s_branch {lbl_back}
        """
        r += ["    " + l.strip() for l in body.strip().split("\n")]
        return r
    def rare2(lbl_rare, lbl_back):
        r = [f"{lbl_rare}:", "    s_nop 15"]
        for i in range(64):
            r.append(f"    v_accvgpr_read_b32 v21, a{A_O+i}")
            r.append(f"    v_mul_f32 v21, v21, v{V_F}")
            r.append(f"    v_accvgpr_write_b32 a{A_O+i}, v21")
        r.append(f"    s_mov_b32 s{S_FLAG}, 0")
        r.append("    s_nop 1")
        r.append(f"    s_branch {lbl_back}")
        return r

    rare_blocks = []
    def check1():
        lr = a.newlabel("rareA"); lb = a.newlabel("backA")
        rare_blocks.extend(rare1(lr, lb))
        return [f"v_cmp_gt_f32 vcc, v{V_MX}, v{V_MTHR}", f"s_cbranch_vccnz {lr}", f"{lb}:"]
    def check2():
        lr = a.newlabel("rareB"); lb = a.newlabel("backB")
        rare_blocks.extend(rare2(lr, lb))
        return [f"s_cmp_lg_u32 s{S_FLAG}, 0", f"s_cbranch_scc1 {lr}", f"{lb}:"]

    a(f"s_mov_b32 s{S_FLAG}, 0")
    items = qk_items(0, 0)
    pre = emit_seq(a, items, 0, {}, peek_k_reads(1))
    a("s_nop 15")
    for t, w in prep_ops(0, list(range(16))): a(t)
    for t in check1(): a(t)
    a(f"s_mov_b32 s{S_FLAG}, 0")
    for gl in spread(post_ops(0), 16)[:NPOST_B]:
        for t in gl: a(t)

    def iteration(j, pre, last=False, vm=4, do_k=True, do_v=True):
        scur = j & 1; snxt = 1 - scur
        a(f"s_waitcnt vmcnt({vm})")
        if 'nobar' not in XF: a("s_barrier")
        if 'nodma' in XF: do_k = do_v = False
        postc = spread(post_ops(scur), 16)[NPOST_B:]
        if not last:
            fill = {i: [] for i in range(32)}
            for k, gl in enumerate(postc): fill[k] += gl
            nprep = 32 - NPOST_B - PREP0
            p0 = spread(prep_ops(snxt, list(range(8))), nprep // 2)
            p1 = spread(prep_ops(snxt, list(range(8, 16))), nprep - nprep // 2)
            for k, gl in enumerate(p0 + p1): fill[PREP0 + k] += gl
            fill[32 - NPOST_B - 1] += check1()
            for k, gl in enumerate(spread(post_ops(snxt), 16)[:NPOST_B]): fill[32 - NPOST_B + k] += gl
            fill[31] += check2()
            a2 = Asm()
            if do_k: dma_k(a2, j % 4)
            fill[1] = fill[1] + [l.strip() for l in a2.lines]
            a2 = Asm()
            if do_v: dma_v(a2, (j + 3) % 4)
            fill[6] = fill[6] + [l.strip() for l in a2.lines]
            def prio(lo, hi):
                l1 = a.newlabel("pr"); l2 = a.newlabel("pr")
                return [f"s_cmp_lt_u32 s{S_W}, 4", f"s_cbranch_scc0 {l1}", f"s_setprio {lo}", f"s_branch {l2}", f"{l1}:", f"s_setprio {hi}", f"{l2}:"]
            if 'prio1' in XF:
                fill[0] = prio(2, 1) + fill[0]
                fill[15] = fill[15] + prio(0, 1)
            if 'prio2' in XF:
                fill[0] = prio(2, 1) + fill[0]
                fill[7] = fill[7] + prio(0, 1)
                fill[15] = fill[15] + prio(2, 1)
                fill[23] = fill[23] + prio(0, 1)
            if 'prio3' in XF:
                fill[0] = prio(2, 1) + fill[0]
                fill[10] = fill[10] + prio(0, 1)
            if 'prio4' in XF:
                fill[0] = prio(1, 0) + fill[0]
                fill[7] = fill[7] + prio(0, 1)
                fill[15] = fill[15] + prio(1, 0)
                fill[23] = fill[23] + prio(0, 1)
            itemsA = qk_items(j + 1, snxt)
            itemsB = pv_items(j)
            nxt = peek_k_reads(j + 2) if not iteration.no_next else []
            pre = emit_seq(a, itemsA + itemsB, pre, fill, nxt)
        else:
            for gl in postc:
                for t in gl: a(t)
            itemsB = pv_items(j)
            a("s_nop 1")
            pre = emit_seq(a, itemsB, 0, {}, [])
        return pre
    iteration.no_next = False

    a(f"s_mov_b32 s{S_CNT}, {1 if 'loop1' in XF else 7}")
    if 'stamp' in XF:
        a("s_memtime s[54:55]")
    a.label("Lk2_loop")
    g_at_loop = gctr[0]
    assert g_at_loop % NRING == 0
    p = pre
    for jj in range(4):
        p = iteration(jj, p)
    assert p == pre, (p, pre)
    assert gctr[0] % NRING == 0
    a(f"s_sub_u32 s{S_CNT}, s{S_CNT}, 1")
    a(f"s_cmp_lg_u32 s{S_CNT}, 0")
    a("s_cbranch_scc1 Lk2_loop")
    p = iteration(28, p, vm=4, do_k=False, do_v=True)
    p = iteration(29, p, vm=2, do_k=False, do_v=False)
    iteration.no_next = True
    p = iteration(30, p, vm=0, do_k=False, do_v=False)
    p = iteration(31, p, last=True, vm=0)
    a(f"v_add_f32 v{V_L}, v{V_L}, v{V_L+1}")
    if 'stamp' in XF:
        a("s_memtime s[56:57]")
    a(f"""
    v_mov_b32 v20, v{V_L}
    v_mov_b32 v21, v{V_L}
    s_nop 1
    v_permlane32_swap_b32 v20, v21
    s_nop 1
    v_add_f32 v20, v20, v21
    v_rcp_f32 v20, v20
    s_lshl_b32 s{S_T2}, s{S_QB}, 3
    s_add_u32 s{S_T2}, s{S_T2}, s{S_W}
    s_lshl_b32 s{S_T2}, s{S_T2}, 18
    s_lshl_b32 s{S_T0}, s{S_HEAD}, 13
    s_add_u32 s{S_T2}, s{S_T2}, s{S_T0}
    s_nop 15
    """)
    for t in range(4):
        for hh in range(2):
            rb = V_S[0] + 8 * (2 * t + hh)
            for x in range(8):
                a(f"v_accvgpr_read_b32 v{rb+x}, a{A_O+16*t+8*hh+x}")
            for x in range(8):
                a(f"v_mul_f32 v{rb+x}, v{rb+x}, v20")
            for x in range(4):
                a(f"v_cvt_pk_bf16_f32 v{rb+x}, v{rb+2*x}, v{rb+2*x+1}")
            k = 2 * t + hh
            if k == 4:
                a(f"s_add_u32 s{S_T2}, s{S_T2}, 4096")
            a(f"buffer_store_dwordx4 v[{rb}:{rb+3}], v{V_LANE16}, s[{S_SRDO}:{S_SRDO+3}], s{S_T2} offen offset:{(k%4)*1024}")
    if 'stamp' in XF:
        a("s_waitcnt vmcnt(0)")
        a("s_memtime s[58:59]")
        a("s_memrealtime s[62:63]")
        a("s_waitcnt lgkmcnt(0)")
        srd(a, 36, 42, 1 << 20, 80 << 20)
        for i in range(16):
            a(f"v_mov_b32 v{24+i}, s{48+i}")
        a(f"""
        s_lshl_b32 s{S_T0}, s2, 3
        s_add_u32 s{S_T0}, s{S_T0}, s{S_W}
        s_lshl_b32 s{S_T0}, s{S_T0}, 6
        v_mov_b32 v20, 0
        s_mov_b64 exec, 1
        buffer_store_dwordx4 v[24:27], v20, s[36:39], s{S_T0} offen
        buffer_store_dwordx4 v[28:31], v20, s[36:39], s{S_T0} offen offset:16
        buffer_store_dwordx4 v[32:35], v20, s[36:39], s{S_T0} offen offset:32
        buffer_store_dwordx4 v[36:39], v20, s[36:39], s{S_T0} offen offset:48
        """)
    a.label("Lk2_end")
    a("s_endpgm")
    for l in rare_blocks: a.raw(l)
    return kernel_desc("attn_kernel", NVGPR + NAGPR, sgpr=80, accum=NVGPR)
```

```python
from genlib import *
from gen_small import *
from gen_moe import *
from gen_moe2 import WS_Y
import os
RPW = int(os.environ.get('RPW', '1'))
NPOST = 128

def gen_postmoe(a):
    WD = 65536; RED = 98304; ACTL = 106496; FLG = 107008
    SC = " sc1"
    SL = " sc1"
    kernel_begin(a, "pm_kernel")
    a(f"""
    s_cmp_ge_u32 s2, {56 + NPOST}
    s_cbranch_scc1 Lk5_end
    s_load_dwordx2 s[4:5], s[0:1], 56     ; w_gate
    s_load_dwordx2 s[6:7], s[0:1], 64     ; w_up
    s_load_dwordx2 s[8:9], s[0:1], 112    ; ws
    s_load_dwordx2 s[10:11], s[0:1], 72   ; w_down
    s_load_dwordx2 s[64:65], s[0:1], 96   ; out
    s_load_dwordx2 s[66:67], s[0:1], 104  ; debug
    s_load_dwordx2 s[80:81], s[0:1], 0    ; x
    s_load_dwordx2 s[82:83], s[0:1], 48   ; w_r
    v_and_b32 v1, 63, v0
    v_lshrrev_b32 v2, 6, v0
    s_nop 0
    v_readfirstlane_b32 s3, v2            ; wave
    v_lshlrev_b32 v4, 4, v1               ; lane*16
    s_waitcnt lgkmcnt(0)
    """)
    srd(a, 20, 8, 2048 * 4, WS_KEY)
    srd(a, 24, 8, 2048 * 512 * 2, WS_H2)
    srd(a, 32, 8, 2048 * 512 * 2, WS_X2)
    srd(a, 60, 8, 2048 * 4, WS_R)
    srd(a, 68, 64, 2048 * 512 * 2)
    srd(a, 72, 66, 256)
    srd(a, 76, 8, 3072 * 4, WS_MOD)
    a("""
    s_cmp_lt_u32 s2, 56
    s_cbranch_scc1 Lk5_moe
    """)
    srd(a, 12, 80, 2048 * 512 * 2)
    srd(a, 16, 8, 4 * 2048 * 512 * 4, WS_PART)
    srd(a, 28, 82, 1024)
    a("""
    s_sub_u32 s36, s2, 56
    s_lshl_b32 s36, s36, 4
    s_add_u32 s36, s36, s3
    s_mul_i32 s36, s36, RPWX              ; first row of wave
    s_lshl_b32 s37, s36, 10               ; bf16 row byte offset
    s_lshl_b32 s38, s36, 11               ; fp32 row byte offset
    v_lshlrev_b32 v5, 5, v1               ; lane*32
    """.replace("RPWX", str(RPW)))
    for r in range(RPW):
        a(f"s_add_u32 s39, s38, {r*2048}")
        for p in range(4):
            b = 64 + 32 * r + 8 * p
            a(f"buffer_load_dwordx4 v[{b}:{b+3}], v5, s[16:19], s39 offen")
            a(f"buffer_load_dwordx4 v[{b+4}:{b+7}], v5, s[16:19], s39 offen offset:16")
            if p < 3: a("s_add_u32 s39, s39, 0x400000")
    a("""
    buffer_load_dwordx4 v[8:11], v4, s[12:15], s37 offen
    buffer_load_dwordx4 v[96:99], v4, s[28:31], 0 offen              ; w_r
    s_mov_b32 s39, 4096
    buffer_load_dwordx4 v[100:103], v5, s[76:79], s39 offen            ; ga
    buffer_load_dwordx4 v[104:107], v5, s[76:79], s39 offen offset:16
    buffer_load_dwordx4 v[16:19], v5, s[76:79], s39 offen offset:2048  ; sb
    buffer_load_dwordx4 v[20:23], v5, s[76:79], s39 offen offset:2064
    s_mov_b32 s39, 8192
    buffer_load_dwordx4 v[24:27], v5, s[76:79], s39 offen              ; cb
    buffer_load_dwordx4 v[28:31], v5, s[76:79], s39 offen offset:16
    buffer_load_dwordx4 v[108:111], v5, s[76:79], s39 offen offset:2048 ; gb
    buffer_load_dwordx4 v[112:115], v5, s[76:79], s39 offen offset:2064
    s_waitcnt vmcnt(0)
    """)
    for j in range(4):
        unpack_bf16(a, 116 + 2 * j, 117 + 2 * j, 96 + j)
    for r in range(RPW):
        xs = 8 if r == 0 else 128
        pb = 64 + 32 * r
        for j in range(4):
            unpack_bf16(a, 32 + 2 * j, 33 + 2 * j, xs + j)
        for j in range(8):
            a(f"v_add_f32 v{pb+j}, v{pb+j}, v{pb+8+j}")
            a(f"v_add_f32 v{pb+16+j}, v{pb+16+j}, v{pb+24+j}")
            a(f"v_add_f32 v{pb+j}, v{pb+j}, v{pb+16+j}")
            round_bf16(a, pb + j, pb + j)
            a(f"v_mul_f32 v{pb+j}, v{pb+j}, v{100+j}")
            round_bf16(a, pb + j, pb + j)
            a(f"v_add_f32 v{32+j}, v{32+j}, v{pb+j}")
            round_bf16(a, 32 + j, 32 + j)
        ln_mod(a, 32, 12, 24, 16, 40)
        a("v_mul_f32 v56, v40, v116")
        for j in range(1, 8):
            a(f"v_fmac_f32 v56, v{40+j}, v{116+j}")
        wave_allreduce(a, 56, 57, 58)
        round_bf16(a, 56, 56)
        for j in range(4):
            a(f"v_cvt_pk_bf16_f32 v{48+j}, v{40+2*j}, v{41+2*j}")
            a(f"v_cvt_pk_bf16_f32 v{52+j}, v{32+2*j}, v{33+2*j}")
        a(f"buffer_store_dwordx4 v[48:51], v4, s[24:27], s37 offen offset:{r*1024}{SC}")
        a(f"buffer_store_dwordx4 v[52:55], v4, s[32:35], s37 offen offset:{r*1024}{SC}")
        for j in range(8):
            a(f"v_mul_f32 v{pb+j}, v{40+j}, v{108+j}")
            round_bf16(a, pb + j, pb + j)
            a(f"v_add_f32 v{pb+j}, v{pb+j}, v{32+j}")
        for j in range(4):
            a(f"v_cvt_pk_bf16_f32 v{60+j}, v{pb+2*j}, v{pb+1+2*j}")
        a(f"buffer_store_dwordx4 v[60:63], v4, s[68:71], s37 offen offset:{r*1024}{SC}")
        a(f"""
        v_ashrrev_i32 v57, 31, v56
        v_or_b32 v57, 0x80000000, v57
        v_xor_b32 v57, v57, v56
        v_and_b32 v57, 0xffff0000, v57
        s_add_u32 s39, s36, {r}
        s_sub_u32 s40, 2047, s39
        v_or_b32 v57, s40, v57
        s_lshl_b32 s39, s39, 2
        v_mov_b32 v58, 0
        s_mov_b64 exec, 1
        buffer_store_dword v56, v58, s[60:63], s39 offen{SC}
        buffer_store_dword v57, v58, s[20:23], s39 offen{SC}
        s_mov_b64 exec, -1
        """)
    a(f"""
    s_waitcnt vmcnt(0)
    s_barrier
    s_cmp_lg_u32 s3, 0
    s_cbranch_scc1 Lk5_end
    v_mov_b32 v44, 1
    v_mov_b32 v45, 64
    s_mov_b64 exec, 1
    buffer_atomic_add v44, v45, s[72:75], 0 offen sc0 sc1
    s_waitcnt vmcnt(0)
    v_readfirstlane_b32 s36, v44
    s_nop 3
    s_cmp_lg_u32 s36, {NPOST - 1}
    s_cbranch_scc1 Lk5_end
    v_mov_b32 v44, {NPOST}
    v_mov_b32 v45, 128
    buffer_store_dword v44, v45, s[72:75], 0 offen sc0 sc1
    s_branch Lk5_end
    """)
    a.label("Lk5_moe")
    a("s_cmp_ge_u32 s3, 8")
    a("s_cbranch_scc1 Lk5_end")
    a("""
    v_lshrrev_b32 v3, 2, v1
    s_mov_b32 s36, 3584
    v_mul_lo_u32 v3, v3, s36
    v_and_b32 v44, 3, v1
    v_lshlrev_b32 v44, 4, v44
    v_add_u32 v3, v3, v44
    s_lshr_b32 s36, s3, 2
    s_cmp_eq_u32 s36, 0
    s_cselect_b32 s12, s4, s6
    s_cselect_b32 s13, s5, s7
    s_mov_b32 s14, 0x1c0000
    s_mov_b32 s15, 0x00020000
    """)
    srd(a, 16, 10, 1792 * 512 * 2)
    srd(a, 28, 8, 8 * 512 * 4, WS_Y)
    a("""
    s_and_b32 s36, s3, 3
    s_mul_i32 s37, s36, 458752            ; 128 rows * 3584
    s_lshl_b32 s38, s2, 6
    s_add_u32 s37, s37, s38
    s_lshl_b32 s38, s3, 13
    """)
    for c in range(8):
        a(f"s_add_u32 m0, s38, {c*1024}")
        a("s_nop 0")
        a("buffer_load_dwordx4 v3, s[12:15], s37 offen lds")
        if c < 7: a("s_add_u32 s37, s37, 57344")
    a("""
    s_lshl_b32 s37, s2, 15
    s_lshl_b32 s39, s3, 12
    s_add_u32 s37, s37, s39
    """)
    for i in range(4):
        a(f"v_xor_b32 v44, {i << 6}, v4")
        a(f"s_add_u32 m0, s39, {WD + i*1024}")
        a("s_nop 0")
        a("buffer_load_dwordx4 v44, s[16:19], s37 offen lds")
        if i < 3: a("s_add_u32 s37, s37, 1024")
    tr_addr64(a, 5, 1, 6, 7)
    a("v_add_u32 v5, s38, v5")
    a("v_and_b32 v6, 7, v1")
    a(f"""
    v_lshrrev_b32 v47, 5, v1             ; u
    v_and_b32 v48, 15, v1
    v_lshrrev_b32 v48, 2, v48           ; r
    v_lshlrev_b32 v49, 3, v47
    v_add_u32 v49, v49, v48
    v_lshlrev_b32 v49, 10, v49
    v_lshrrev_b32 v50, 4, v1
    v_and_b32 v50, 1, v50
    v_lshlrev_b32 v50, 5, v50
    v_add_u32 v49, v49, v50
    v_and_b32 v50, 3, v1
    v_lshlrev_b32 v50, 3, v50
    v_add_u32 v49, v49, v50
    s_lshr_b32 s37, s3, 1
    s_lshl_b32 s37, s37, 8
    s_add_u32 s37, s37, {WD}
    v_add_u32 v49, s37, v49
    s_and_b32 s37, s3, 1
    s_lshl_b32 s37, s37, 1
    v_xor_b32 v50, s37, v48
    v_lshlrev_b32 v50, 6, v50
    v_add_u32 v51, v49, v50
    s_add_u32 s37, s37, 1
    v_xor_b32 v50, s37, v48
    v_lshlrev_b32 v50, 6, v50
    v_add_u32 v52, v49, v50
    v_lshlrev_b32 v53, 6, v6
    v_lshlrev_b32 v50, 4, v47
    v_add_u32 v53, v53, v50
    v_add_u32 v53, {ACTL}, v53
    v_and_b32 v54, 31, v1
    v_lshlrev_b32 v54, 2, v54
    v_lshlrev_b32 v50, 13, v47
    v_add_u32 v54, v54, v50            ; y voffset
    v_lshlrev_b32 v55, 5, v1             ; lane*32
    s_mov_b32 s37, 10240
    buffer_load_dwordx4 v[56:59], v55, s[76:79], s37 offen
    buffer_load_dwordx4 v[60:63], v55, s[76:79], s37 offen offset:16
    v_mov_b32 v45, 128
    """)
    a("""
    s_cmp_lg_u32 s3, 0
    s_cbranch_scc1 Lk5_go
    """)
    a.label("Lk5_poll")
    a(f"""
    buffer_load_dword v44, v45, s[72:75], 0 offen sc0 sc1
    s_waitcnt vmcnt(0)
    v_readfirstlane_b32 s37, v44
    s_nop 3
    s_cmp_ge_u32 s37, {NPOST}
    s_cbranch_scc1 Lk5_go
    s_sleep 8
    s_branch Lk5_poll
    """)
    a.label("Lk5_go")
    a("s_barrier")
    K = 8; T = 40; T1 = 41; T2 = 42
    a(f"v_lshlrev_b32 v{T}, 7, v1")
    for i in range(8):
        a(f"buffer_load_dwordx4 v[{K+4*i}:{K+4*i+3}], v{T}, s[20:23], 0 offen offset:{16*i}{SL}")
    a("s_waitcnt vmcnt(0)")
    top8k_compute(a, K, T, T1, T2, 40, 48)
    sel8(a, 7, 6, 44, 40)
    a("""
    v_lshlrev_b32 v7, 10, v7
    v_lshrrev_b32 v44, 5, v1
    v_lshlrev_b32 v44, 4, v44
    v_add_u32 v7, v7, v44
    s_lshl_b32 s37, s36, 8
    """)
    for s in range(8):
        a(f"buffer_load_dwordx4 v[{64+4*s}:{67+4*s}], v7, s[24:27], s37 offen offset:{s*32}{SL}")
    for t in range(8):
        a(f"s_cmp_eq_u32 s3, {t}")
        a(f"s_cselect_b32 s58, s{40+t}, s58")
    a(f"""
    s_lshl_b32 s59, s58, 10
    buffer_load_dwordx4 v[24:27], v4, s[24:27], s59 offen{SL}      ; h2 row
    buffer_load_dwordx4 v[28:31], v4, s[32:35], s59 offen{SL}      ; x2 row
    s_lshl_b32 s37, s58, 2
    v_mov_b32 v45, 0
    buffer_load_dword v32, v45, s[60:63], s37 offen{SL}             ; r
    s_waitcnt vmcnt(3)
    """)
    for s in range(8):
        a(f"ds_read_b64_tr_b16 v[{96+4*s}:{97+4*s}], v5 offset:{s*1024}")
        a(f"ds_read_b64_tr_b16 v[{98+4*s}:{99+4*s}], v5 offset:{s*1024+256}")
    for s in range(8):
        a(f"s_waitcnt lgkmcnt({2*(7-s)})")
        c = "0" if s == 0 else "v[8:23]"
        a(f"v_mfma_f32_32x32x16_bf16 v[8:23], v[{96+4*s}:{99+4*s}], v[{64+4*s}:{67+4*s}], {c}")
    a(f"""
    v_and_b32 v44, 31, v1
    v_lshlrev_b32 v45, 7, v44
    v_lshrrev_b32 v46, 5, v1
    v_lshlrev_b32 v46, 4, v46
    v_add_u32 v45, v45, v46
    s_lshl_b32 s37, s3, 10
    s_add_u32 s37, s37, {RED}
    v_add_u32 v45, s37, v45
    v_cmp_gt_u32 vcc, 8, v44
    s_nop 7
    s_nop 3
    s_and_saveexec_b64 s[56:57], vcc
    """)
    for q in range(4):
        a(f"ds_write_b128 v45, v[{8+4*q}:{11+4*q}] offset:{q*32}")
    a(f"""
    s_mov_b64 exec, -1
    s_waitcnt lgkmcnt(0)
    s_barrier
    s_cmp_ge_u32 s3, 4
    s_cbranch_scc1 Lk5_noact
    v_lshlrev_b32 v44, 2, v0
    v_add_u32 v44, {RED}, v44
    """)
    for w in range(8):
        a(f"ds_read_b32 v{8+w}, v44 offset:{w*1024}")
    a("""
    s_waitcnt lgkmcnt(0)
    v_add_f32 v8, v8, v9
    v_add_f32 v10, v10, v11
    v_add_f32 v8, v8, v10
    v_add_f32 v12, v12, v13
    v_add_f32 v14, v14, v15
    v_add_f32 v12, v12, v14
    """)
    round_bf16(a, 8, 8)
    round_bf16(a, 12, 12)
    a(f"""
    s_mov_b32 s36, {LOG2E:#x}
    v_mul_f32 v9, s36, v8
    v_exp_f32 v9, -v9
    s_nop 0
    v_add_f32 v9, 1.0, v9
    v_rcp_f32 v9, v9
    s_nop 0
    v_mul_f32 v8, v8, v9
    """)
    round_bf16(a, 8, 8)
    a(f"""
    v_mul_f32 v8, v8, v12
    v_cvt_pk_bf16_f32 v8, v8, v8
    v_lshlrev_b32 v44, 1, v0
    v_add_u32 v44, {ACTL}, v44
    ds_write_b16 v44, v8
    """)
    a.label("Lk5_noact")
    a("""
    s_waitcnt lgkmcnt(0)
    s_barrier
    ds_read_b128 v[64:67], v53
    ds_read_b128 v[68:71], v53 offset:32
    """)
    for x in range(2):
        for s in range(2):
            b = 72 + 8 * x + 4 * s
            a(f"ds_read_b64_tr_b16 v[{b}:{b+1}], v{51+x} offset:{s*16384}")
            a(f"ds_read_b64_tr_b16 v[{b+2}:{b+3}], v{51+x} offset:{s*16384+4096}")
    a("s_waitcnt lgkmcnt(0)")
    for x in range(2):
        d = 96 + 16 * x
        a(f"v_mfma_f32_32x32x16_bf16 v[{d}:{d+15}], v[64:67], v[{72+8*x}:{75+8*x}], 0")
        a(f"v_mfma_f32_32x32x16_bf16 v[{d}:{d+15}], v[68:71], v[{76+8*x}:{79+8*x}], v[{d}:{d+15}]")
    a("""
    s_lshl_b32 s37, s3, 8
    s_add_u32 s39, s37, 4096
    s_nop 15
    """)
    for x in range(2):
        for i in range(4):
            a(f"buffer_atomic_add_f32 v{96+16*x+i}, v54, s[28:31], s{37 if i < 2 else 39} offen offset:{x*128 + (i & 1)*2048}")
    a(f"""
    s_waitcnt vmcnt(0)
    s_barrier
    s_cmp_lg_u32 s3, 0
    s_cbranch_scc1 Lk5_wait
    v_mov_b32 v44, 1
    v_mov_b32 v45, 0
    s_mov_b64 exec, 1
    buffer_atomic_add v44, v45, s[72:75], 0 offen sc0 sc1
    s_waitcnt vmcnt(0)
    v_mov_b32 v45, {FLG}
    ds_write_b32 v45, v44
    s_mov_b64 exec, -1
    s_waitcnt lgkmcnt(0)
    """)
    a.label("Lk5_wait")
    a(f"""
    s_barrier
    v_mov_b32 v45, {FLG}
    ds_read_b32 v44, v45
    s_waitcnt lgkmcnt(0)
    s_nop 0
    v_readfirstlane_b32 s36, v44
    s_nop 3
    s_cmp_lg_u32 s36, 55
    s_cbranch_scc1 Lk5_end
    s_lshl_b32 s37, s3, 11
    """)
    for j in range(8):
        a(f"v_mov_b32 v{8+j}, 0")
    for j in range(8):
        a(f"buffer_atomic_add_f32 v{8+j}, v55, s[28:31], s37 offen offset:{4*j} sc0")
    a(f"""
    s_mov_b32 s37, {LOG2E:#x}
    v_mul_f32 v32, s37, v32
    v_exp_f32 v32, -v32
    s_nop 0
    v_add_f32 v32, 1.0, v32
    v_rcp_f32 v32, v32
    s_nop 0
    """)
    round_bf16(a, 32, 32)
    for j in range(4):
        unpack_bf16(a, 64 + 2 * j, 65 + 2 * j, 24 + j)
        unpack_bf16(a, 72 + 2 * j, 73 + 2 * j, 28 + j)
    a("s_waitcnt vmcnt(0)")
    for j in range(8):
        round_bf16(a, 8 + j, 8 + j)
        a(f"v_mul_f32 v{8+j}, v{8+j}, v32")
        round_bf16(a, 8 + j, 8 + j)
        a(f"v_add_f32 v{8+j}, v{8+j}, v{64+j}")
        round_bf16(a, 8 + j, 8 + j)
        a(f"v_mul_f32 v{8+j}, v{8+j}, v{56+j}")
        round_bf16(a, 8 + j, 8 + j)
        a(f"v_add_f32 v{8+j}, v{8+j}, v{72+j}")
    for j in range(4):
        a(f"v_cvt_pk_bf16_f32 v{80+j}, v{8+2*j}, v{9+2*j}")
    a(f"buffer_store_dwordx4 v[80:83], v4, s[68:71], s59 offen{SC}")
    a.label("Lk5_end")
    a("s_endpgm")
    return kernel_desc("pm_kernel", 128, sgpr=88)
```

```python
from genlib import *
from gen_small import *
import os
import gen_moe, gen_moe2, gen_pm, gen_oproj2
XF = set(os.environ.get('XF', '').split(','))

def gen_k3(a):
    kernel_begin(a, "oproj_kernel")
    if 'st3' in XF: a("s_memtime s[48:49]")
    S_W = 3; S_MT = 4; S_NT = 5; S_KSP = 6; S_T0 = 7
    S_SRDW = 8; S_SRDO = 12; S_SRDP = 16; S_WOFF = 20; S_OOFF = 21; S_T1 = 22; S_W1K = 23; S_W4K = 24
    V_WDMA = 1; V_L16 = 2; V_AA = 4
    V_BA = 6
    V_F = 8
    V_ACC = 56
    a(f"""
    s_cmp_ge_u32 s2, 256
    s_cbranch_scc1 Lk3_end
    s_load_dwordx2 s[36:37], s[0:1], 32     ; wo
    s_load_dwordx2 s[42:43], s[0:1], 112    ; ws
    s_and_b32 s{S_T0}, s2, 7
    s_and_b32 s{S_KSP}, s{S_T0}, 3
    s_lshr_b32 s{S_T0}, s{S_T0}, 2
    s_lshl_b32 s{S_MT}, s{S_T0}, 3
    s_lshr_b32 s{S_T0}, s2, 3
    s_and_b32 s{S_NT}, s{S_T0}, 3
    s_lshr_b32 s{S_T0}, s{S_T0}, 2
    s_add_u32 s{S_MT}, s{S_MT}, s{S_T0}
    v_lshrrev_b32 v1, 6, v0
    s_nop 0
    v_readfirstlane_b32 s{S_W}, v1
    v_and_b32 v0, 63, v0
    s_lshl_b32 s{S_W1K}, s{S_W}, 10
    s_lshl_b32 s{S_W4K}, s{S_W}, 12
    v_lshlrev_b32 v{V_L16}, 4, v0
    v_lshrrev_b32 v20, 4, v0            ; i>>4
    v_and_b32 v21, 15, v0
    v_lshlrev_b32 v22, 2, v20
    v_xor_b32 v22, v22, v21
    v_lshlrev_b32 v22, 4, v22
    v_lshlrev_b32 v23, 10, v20
    v_add_u32 v{V_WDMA}, v22, v23       ; (i>>4)*1024 + swz*16
    ; tr read addr: (4u + r)*256 + 64*(t^r) + 32g + 8c ; t = 2*wn + x
    v_lshrrev_b32 v20, 2, v21           ; r
    v_lshrrev_b32 v23, 4, v0
    v_and_b32 v23, 1, v23
    v_lshlrev_b32 v23, 5, v23
    v_and_b32 v21, 3, v0
    v_lshlrev_b32 v21, 3, v21
    v_add_u32 v21, v21, v23
    v_lshlrev_b32 v23, 8, v20
    v_add_u32 v21, v21, v23
    v_lshrrev_b32 v22, 5, v0
    v_lshlrev_b32 v23, 10, v22
    v_add_u32 v21, v21, v23
    s_and_b32 s{S_T0}, s{S_W}, 1        ; wn
    s_lshl_b32 s{S_T0}, s{S_T0}, 1
    v_xor_b32 v22, s{S_T0}, v20
    v_lshlrev_b32 v22, 6, v22
    v_add_u32 v{V_AA}, v22, v21
    s_add_u32 s{S_T0}, s{S_T0}, 1
    v_xor_b32 v22, s{S_T0}, v20
    v_lshlrev_b32 v22, 6, v22
    v_add_u32 v{V_AA+1}, v22, v21
    s_lshr_b32 s{S_T0}, s{S_W}, 1
    s_lshl_b32 s{S_T0}, s{S_T0}, 13
    s_add_u32 s{S_T0}, s{S_T0}, 16384
    v_add_u32 v{V_BA}, s{S_T0}, v{V_L16}
    s_waitcnt lgkmcnt(0)
    """)
    srd(a, S_SRDW, 36, 4096 * 512 * 2)
    srd(a, S_SRDO, 42, 2048 * 4096 * 2, WS_OF)
    srd(a, S_SRDP, 42, 4 * 2048 * 512 * 4, WS_PART)
    a(f"""
    s_lshl_b32 s{S_WOFF}, s{S_KSP}, 20
    s_lshl_b32 s{S_T0}, s{S_NT}, 8
    s_add_u32 s{S_WOFF}, s{S_WOFF}, s{S_T0}
    s_add_u32 s{S_WOFF}, s{S_WOFF}, s{S_W4K}
    s_lshl_b32 s{S_OOFF}, s{S_MT}, 2
    s_add_u32 s{S_OOFF}, s{S_OOFF}, s{S_W}
    s_lshl_b32 s{S_OOFF}, s{S_OOFF}, 18
    s_lshl_b32 s{S_T0}, s{S_KSP}, 16
    s_add_u32 s{S_OOFF}, s{S_OOFF}, s{S_T0}
    """)
    a(f"""
    s_cmp_lt_u32 s{S_W}, 4
    s_cbranch_scc1 Lk3_main
    s_cmp_ge_u32 s2, 16
    s_cbranch_scc1 Lk3_noz
    s_add_u32 s44, s42, {gen_moe2.WS_Y}
    s_addc_u32 s45, s43, 0
    s_mov_b32 s46, 16384
    s_mov_b32 s47, 0x00020000
    v_mov_b32 v100, 0
    v_mov_b32 v101, 0
    v_mov_b32 v102, 0
    v_mov_b32 v103, 0
    s_lshl_b32 s{S_T0}, s2, 10
    buffer_store_dwordx4 v[100:103], v{V_L16}, s[44:47], s{S_T0} offen
Lk3_noz:
    v_lshlrev_b32 v122, 7, v0
    s_lshl_b32 s{S_T0}, s{S_MT}, 2
    s_add_u32 s{S_T0}, s{S_T0}, s{S_NT}
    s_lshl_b32 s{S_T0}, s{S_T0}, 18
    s_lshl_b32 s{S_T1}, s{S_KSP}, 16
    s_add_u32 s{S_T0}, s{S_T0}, s{S_T1}          ; o base
    v_lshrrev_b32 v124, 4, v0
    v_lshlrev_b32 v124, 16, v124
    v_lshrrev_b32 v125, 1, v0
    v_and_b32 v125, 7, v125
    v_lshlrev_b32 v125, 10, v125
    v_add_u32 v124, v124, v125
    v_and_b32 v125, 1, v0
    v_lshlrev_b32 v125, 7, v125
    v_add_u32 v124, v124, v125
    s_lshl_b32 s{S_WOFF}, s{S_KSP}, 20
    s_and_b32 s{S_T1}, s{S_MT}, 7
    s_lshl_b32 s{S_T1}, s{S_T1}, 13
    s_add_u32 s{S_WOFF}, s{S_WOFF}, s{S_T1}
    s_lshl_b32 s{S_T1}, s{S_NT}, 8
    s_add_u32 s{S_WOFF}, s{S_WOFF}, s{S_T1}
    """)
    import os
    sched = [int(x) for x in os.environ.get('PFS', '0,1,4,8').split(',')]
    nb = 0
    for q in range(4):
        while nb < sched[q]:
            a("s_barrier"); nb += 1
        if q > 0:
            a(f"buffer_load_dword v{100+3*q}, v124, s[{S_SRDW}:{S_SRDW+3}], s{S_WOFF} offen")
        a(f"s_add_u32 s{S_WOFF}, s{S_WOFF}, 262144")
        if q > 0:
            a(f"buffer_load_dword v{101+3*q}, v122, s[{S_SRDO}:{S_SRDO+3}], s{S_T0} offen")
        a(f"s_add_u32 s{S_T0}, s{S_T0}, 8192")
        a(f"buffer_load_dword v{102+3*q}, v122, s[{S_SRDO}:{S_SRDO+3}], s{S_T0} offen")
        a(f"s_add_u32 s{S_T0}, s{S_T0}, 8192")
    while nb < 16:
        a("s_barrier"); nb += 1
    a("s_endpgm")
    a.label("Lk3_main")
    def dma_stage(st):
        base = (st % 4) * 32768
        out = []
        for x in range(4):
            out.append([f"s_add_u32 m0, s{S_W1K}, {base + x*4096}",
                        f"s_add_u32 s{S_T1}, s{S_WOFF}, {x*16384}",
                        f"buffer_load_dwordx4 v{V_WDMA}, s[{S_SRDW}:{S_SRDW+3}], s{S_T1} offen lds"])
        for x in range(4):
            g = []
            if x == 0:
                g += [f"s_add_u32 m0, s{S_W4K}, {base + 16384}", f"s_add_u32 s{S_WOFF}, s{S_WOFF}, 65536"]
            g += [f"buffer_load_dwordx4 v{V_L16}, s[{S_SRDO}:{S_SRDO+3}], s{S_OOFF} offen offset:{x*1024} lds"]
            if x == 3:
                g += [f"s_add_u32 s{S_OOFF}, s{S_OOFF}, 4096"]
            out.append(g)
        return out
    for st in range(3):
        for g in dma_stage(st):
            for t in g: a(t)
    PF = False
    def reads(gk):
        st, s = gk // 4, gk % 4
        base = (st % 4) * 32768
        f = V_F + 16 * (gk % 3)
        r = []
        for x in range(2):
            r.append((f + 4 * x, V_AA + x, base + s * 4096, 'tr'))
        for x in range(2):
            r.append((f + 8 + 4 * x, V_BA, base + x * 4096 + s * 1024, 'b128'))
        return r
    a(f"v_add_u32 v3, 0x10000, v{V_BA}")
    a(f"v_add_u32 v120, 0x10000, v{V_AA}")
    a(f"v_add_u32 v121, 0x10000, v{V_AA+1}")
    def read_list(gk):
        out = []
        for (dst, ar, off, kind) in reads(gk):
            if off >= 65536:
                off -= 65536; ar = 3 if kind == 'b128' else 120 + (ar - V_AA)
            if kind == 'tr':
                out.append(f"ds_read_b64_tr_b16 v[{dst}:{dst+1}], v{ar} offset:{off}")
                out.append(f"ds_read_b64_tr_b16 v[{dst+2}:{dst+3}], v{ar} offset:{off+2048}")
            else:
                out.append(f"ds_read_b128 v[{dst}:{dst+3}], v{ar} offset:{off}")
        return out
    NK = 64
    for st in range(16):
        a(f"s_waitcnt vmcnt({(11 if (st == 0 and PF) else 8) if (st < 14 and 'k3nodma' not in XF) else 0})")
        a("s_barrier")
        if 'st3' in XF and st in (0, 1, 8): a(f"s_memtime s[{50 + 2*(0,1,8).index(st)}:{51 + 2*(0,1,8).index(st)}]")
        if st == 0:
            for t in read_list(0) + read_list(1): a(t)
        dm = dma_stage(st + 3) if (st + 3 < 16 and 'k3nodma' not in XF) else []
        for s in range(4):
            gk = st * 4 + s
            a(f"s_waitcnt lgkmcnt({6 if gk + 1 < NK else 0})")
            f = V_F + 16 * (gk % 3)
            rl = read_list(gk + 2) if gk + 2 < NK else []
            k = 0
            for x in range(2):
                for y in range(2):
                    d = V_ACC + 16 * (2 * x + y)
                    c = "0" if gk == 0 else f"v[{d}:{d+15}]"
                    if 'k3nomf' not in XF: a(f"v_mfma_f32_32x32x16_bf16 v[{d}:{d+15}], v[{f+8+4*y}:{f+8+4*y+3}], v[{f+4*x}:{f+4*x+3}], {c}")
                    for t in rl[2*k:2*k+2]: a(t)
                    if k % 2 == 1 and dm:
                        for t in dm.pop(0): a(t)
                    k += 1
    if 'st3' in XF: a("s_memtime s[56:57]")
    a(f"""
    s_nop 15
    v_and_b32 v20, 31, v0
    v_lshlrev_b32 v20, 2, v20
    v_lshrrev_b32 v21, 5, v0
    v_lshlrev_b32 v21, 13, v21
    v_add_u32 v20, v20, v21
    s_lshl_b32 s{S_T0}, s{S_KSP}, 22
    s_lshl_b32 s{S_T1}, s{S_MT}, 18
    s_add_u32 s{S_T0}, s{S_T0}, s{S_T1}
    s_lshr_b32 s{S_T1}, s{S_W}, 1
    s_lshl_b32 s{S_T1}, s{S_T1}, 17
    s_add_u32 s{S_T0}, s{S_T0}, s{S_T1}
    s_lshl_b32 s{S_T1}, s{S_NT}, 9
    s_add_u32 s{S_T0}, s{S_T0}, s{S_T1}
    s_and_b32 s{S_T1}, s{S_W}, 1
    s_lshl_b32 s{S_T1}, s{S_T1}, 8
    s_add_u32 s{S_T0}, s{S_T0}, s{S_T1}
    """)
    for y in range(2):
        for i in range(16):
            row = y * 32 + 8 * (i >> 2) + (i & 3)
            if i & 1 == 0:
                a(f"s_add_u32 s{S_T1}, s{S_T0}, {row * 2048}")
            for x in range(2):
                d = V_ACC + 16 * (2 * x + y)
                if 'k3nost' in XF and (x or y or i): continue
                a(f"buffer_store_dword v{d+i}, v20, s[{S_SRDP}:{S_SRDP+3}], s{S_T1} offen offset:{x*128 + (i&1)*2048}")
    if 'st3' in XF:
        a("s_waitcnt vmcnt(0)")
        a("s_memtime s[58:59]")
        a("s_waitcnt lgkmcnt(0)")
        srd(a, 36, 42, 1 << 20, 81 << 20)
        for i in range(12):
            a(f"v_mov_b32 v{24+i}, s{48+i}")
        a(f"""
        s_lshl_b32 s{S_T0}, s2, 2
        s_add_u32 s{S_T0}, s{S_T0}, s{S_W}
        s_lshl_b32 s{S_T0}, s{S_T0}, 6
        v_mov_b32 v20, 0
        s_mov_b64 exec, 1
        buffer_store_dwordx4 v[24:27], v20, s[36:39], s{S_T0} offen
        buffer_store_dwordx4 v[28:31], v20, s[36:39], s{S_T0} offen offset:16
        buffer_store_dwordx4 v[32:35], v20, s[36:39], s{S_T0} offen offset:32
        """)
    a.label("Lk3_end")
    a("s_endpgm")
    return kernel_desc("oproj_kernel", 128, sgpr=64)

def gen_k4(a):
    kernel_begin(a, "post_kernel")
    a("""
    s_cmp_ge_u32 s2, 512
    s_cbranch_scc1 Lk4_end
    s_load_dwordx2 s[4:5], s[0:1], 0      ; x
    s_load_dwordx2 s[6:7], s[0:1], 48     ; w_r
    s_load_dwordx2 s[8:9], s[0:1], 112    ; ws
    s_load_dwordx2 s[10:11], s[0:1], 96   ; out
    v_and_b32 v1, 63, v0
    v_lshrrev_b32 v2, 6, v0
    s_lshl_b32 s44, s2, 2
    v_add_u32 v2, s44, v2            ; row
    v_lshlrev_b32 v3, 10, v2
    v_lshlrev_b32 v4, 4, v1
    v_add_u32 v3, v3, v4
    v_lshlrev_b32 v5, 5, v1
    v_lshlrev_b32 v6, 1, v3
    s_waitcnt lgkmcnt(0)
    """)
    srd(a, 12, 4, 2048 * 512 * 2)
    srd(a, 16, 8, 3072 * 4, WS_MOD)
    srd(a, 20, 8, 4 * 2048 * 512 * 4, WS_PART)
    srd(a, 24, 6, 1024)
    srd(a, 28, 10, 2048 * 512 * 2)
    srd(a, 32, 8, 2048 * 512 * 2, WS_X2)
    srd(a, 36, 8, 2048 * 512 * 2, WS_H2)
    srd(a, 40, 8, 65536 + 2048 * 4, WS_R)
    srd(a, 48, 8, 8 * 512 * 4, gen_moe2.WS_Y)
    a("""
    s_cmp_ge_u32 s2, 16
    s_cbranch_scc1 Lk4_noz
    v_lshlrev_b32 v7, 2, v0
    v_mov_b32 v8, 0
    s_lshl_b32 s45, s2, 10
    buffer_store_dword v8, v7, s[48:51], s45 offen
    """)
    a.label("Lk4_noz")
    a("s_mov_b32 s45, 0")
    for p in range(4):
        a(f"buffer_load_dwordx4 v[{64+8*p}:{67+8*p}], v6, s[20:23], s45 offen")
        a(f"buffer_load_dwordx4 v[{68+8*p}:{71+8*p}], v6, s[20:23], s45 offen offset:16")
        if p < 3: a("s_add_u32 s45, s45, 0x400000")
    a("""
    buffer_load_dwordx4 v[8:11], v3, s[12:15], 0 offen
    buffer_load_dwordx4 v[96:99], v4, s[24:27], 0 offen
    s_mov_b32 s45, 4096
    buffer_load_dwordx4 v[100:103], v5, s[16:19], s45 offen           ; ga
    buffer_load_dwordx4 v[104:107], v5, s[16:19], s45 offen offset:16
    buffer_load_dwordx4 v[16:19], v5, s[16:19], s45 offen offset:2048  ; sb
    buffer_load_dwordx4 v[20:23], v5, s[16:19], s45 offen offset:2064
    s_mov_b32 s45, 8192
    buffer_load_dwordx4 v[24:27], v5, s[16:19], s45 offen             ; cb
    buffer_load_dwordx4 v[28:31], v5, s[16:19], s45 offen offset:16
    buffer_load_dwordx4 v[108:111], v5, s[16:19], s45 offen offset:2048 ; gb
    buffer_load_dwordx4 v[112:115], v5, s[16:19], s45 offen offset:2064
    s_waitcnt vmcnt(0)
    """)
    for j in range(4):
        unpack_bf16(a, 32 + 2 * j, 33 + 2 * j, 8 + j)
    for j in range(8):
        a(f"v_add_f32 v{64+j}, v{64+j}, v{72+j}")
        a(f"v_add_f32 v{80+j}, v{80+j}, v{88+j}")
        a(f"v_add_f32 v{64+j}, v{64+j}, v{80+j}")
        round_bf16(a, 64 + j, 64 + j)
        a(f"v_mul_f32 v{64+j}, v{64+j}, v{100+j}")
        round_bf16(a, 64 + j, 64 + j)
        a(f"v_add_f32 v{32+j}, v{32+j}, v{64+j}")
        round_bf16(a, 32 + j, 32 + j)
    ln_mod(a, 32, 12, 24, 16, 40)
    for j in range(4):
        unpack_bf16(a, 64 + 2 * j, 65 + 2 * j, 96 + j)
    a("v_mul_f32 v72, v40, v64")
    for j in range(1, 8):
        a(f"v_fmac_f32 v72, v{40+j}, v{64+j}")
    wave_allreduce(a, 72, 73, 74)
    round_bf16(a, 72, 72)
    for j in range(4):
        a(f"v_cvt_pk_bf16_f32 v{48+j}, v{40+2*j}, v{41+2*j}")
        a(f"v_cvt_pk_bf16_f32 v{52+j}, v{32+2*j}, v{33+2*j}")
    a("buffer_store_dwordx4 v[48:51], v3, s[36:39], 0 offen")
    a("buffer_store_dwordx4 v[52:55], v3, s[32:35], 0 offen")
    for j in range(8):
        a(f"v_mul_f32 v{64+j}, v{40+j}, v{108+j}")
        round_bf16(a, 64 + j, 64 + j)
        a(f"v_add_f32 v{64+j}, v{64+j}, v{32+j}")
    for j in range(4):
        a(f"v_cvt_pk_bf16_f32 v{56+j}, v{64+2*j}, v{65+2*j}")
    a("buffer_store_dwordx4 v[56:59], v3, s[28:31], 0 offen")
    a("""
    v_ashrrev_i32 v73, 31, v72
    v_or_b32 v73, 0x80000000, v73
    v_xor_b32 v73, v73, v72
    v_and_b32 v73, 0xffff0000, v73
    v_sub_u32 v74, 2047, v2
    v_or_b32 v73, v73, v74
    v_lshlrev_b32 v2, 2, v2
    v_cmp_eq_u32 vcc, 0, v1
    s_and_saveexec_b64 s[46:47], vcc
    buffer_store_dword v72, v2, s[40:43], 0 offen
    s_mov_b32 s45, 65536
    buffer_store_dword v73, v2, s[40:43], s45 offen
    """)
    a.label("Lk4_end")
    a("s_endpgm")
    return kernel_desc("post_kernel", 120, sgpr=64)

def top8(a, vlane, srd_r, v0, sidx, skey):
    K = v0; T = v0 + 32; T1 = v0 + 33; T2 = v0 + 34; T3 = v0 + 35
    a(f"v_lshlrev_b32 v{T}, 7, v{vlane}")
    for i in range(8):
        a(f"buffer_load_dwordx4 v[{K+4*i}:{K+4*i+3}], v{T}, s[{srd_r}:{srd_r+3}], 0 offen offset:{16*i}")
    a(f"v_lshlrev_b32 v{T1}, 5, v{vlane}")
    a(f"v_sub_u32 v{T1}, 2047, v{T1}")
    a("s_waitcnt vmcnt(0)")
    for i in range(32):
        a(f"v_ashrrev_i32 v{T2}, 31, v{K+i}")
        a(f"v_or_b32 v{T2}, 0x80000000, v{T2}")
        a(f"v_xor_b32 v{K+i}, v{K+i}, v{T2}")
        a(f"v_and_b32 v{K+i}, 0xffff0000, v{K+i}")
        a(f"v_subrev_u32 v{T2}, {i}, v{T1}")
        a(f"v_or_b32 v{K+i}, v{K+i}, v{T2}")
    for rnd in range(8):
        if rnd == 0:
            a(f"v_max3_u32 v{T}, v{K}, v{K+1}, v{K+2}")
            for i in range(3, 31, 2):
                a(f"v_max3_u32 v{T}, v{T}, v{K+i}, v{K+i+1}")
            a(f"v_max_u32 v{T}, v{T}, v{K+31}")
            wave_allreduce(a, T, T1, T2, op="v_max_u32")
            a("s_nop 0")
            a(f"v_readfirstlane_b32 s{skey}, v{T}")
        else:
            a(f"s_sub_u32 s{sidx+rnd}, s{skey+rnd-1}, 1")
            a(f"v_sub_u32 v{T}, s{sidx+rnd}, v{K}")
            for i in range(1, 31, 2):
                a(f"v_sub_u32 v{T1}, s{sidx+rnd}, v{K+i}")
                a(f"v_sub_u32 v{T2}, s{sidx+rnd}, v{K+i+1}")
                a(f"v_min3_u32 v{T}, v{T}, v{T1}, v{T2}")
            a(f"v_sub_u32 v{T1}, s{sidx+rnd}, v{K+31}")
            a(f"v_min_u32 v{T}, v{T}, v{T1}")
            wave_allreduce(a, T, T1, T2, op="v_min_u32")
            a("s_nop 0")
            a(f"v_readfirstlane_b32 s{skey+rnd}, v{T}")
            a("s_nop 3")
            a(f"s_sub_u32 s{skey+rnd}, s{sidx+rnd}, s{skey+rnd}")
    a("s_nop 3")
    for rnd in range(8):
        a(f"s_and_b32 s{sidx+rnd}, s{skey+rnd}, 0x7ff")
        a(f"s_sub_u32 s{sidx+rnd}, 2047, s{sidx+rnd}")

def gen_k5(a):
    kernel_begin(a, "moe1_kernel")
    a("""
    s_cmp_ge_u32 s2, 56
    s_cbranch_scc1 Lk5_end
    s_load_dwordx2 s[4:5], s[0:1], 56     ; w_gate
    s_load_dwordx2 s[6:7], s[0:1], 64     ; w_up
    s_load_dwordx2 s[8:9], s[0:1], 112    ; ws
    v_and_b32 v1, 63, v0
    s_waitcnt lgkmcnt(0)
    """)
    srd(a, 12, 4, 512 * 1792 * 2)
    srd(a, 16, 6, 512 * 1792 * 2)
    srd(a, 20, 8, 2048 * 4, WS_R)
    srd(a, 24, 8, 2048 * 512 * 2, WS_H2)
    srd(a, 28, 8, 1792 * 8 * 2, WS_ACT)
    srd(a, 32, 8, 64, WS_IDX)
    a("""
    v_and_b32 v2, 15, v0
    v_lshrrev_b32 v3, 4, v0
    s_mov_b32 s36, 114688
    v_mul_lo_u32 v4, v3, s36
    v_lshlrev_b32 v5, 2, v2
    v_add_u32 v4, v4, v5
    s_lshl_b32 s37, s2, 6
    """)
    for kk in range(32):
        a(f"buffer_load_dword v{128+kk}, v4, s[12:15], s37 offen")
        a(f"buffer_load_dword v{160+kk}, v4, s[16:19], s37 offen")
        if kk < 31: a("s_add_u32 s37, s37, 3584")
    top8(a, 1, 20, 8, 40, 48)
    a("""
    v_lshrrev_b32 v5, 5, v0
    v_and_b32 v6, 31, v0
    """)
    a("v_mov_b32 v7, s40")
    for t in range(1, 8):
        a(f"v_cmp_eq_u32 vcc, {t}, v5")
        a(f"v_mov_b32 v44, s{40+t}")
        a("s_nop 0")
        a(f"v_cndmask_b32 v7, v7, v44, vcc")
    a("""
    v_lshlrev_b32 v7, 10, v7
    v_lshlrev_b32 v44, 5, v6
    v_add_u32 v7, v7, v44
    buffer_load_dwordx4 v[8:11], v7, s[24:27], 0 offen
    buffer_load_dwordx4 v[12:15], v7, s[24:27], 0 offen offset:16
    v_lshlrev_b32 v44, 9, v6          ; kq*16*32
    v_lshlrev_b32 v45, 2, v5
    v_add_u32 v44, v44, v45
    s_waitcnt vmcnt(0)
    """)
    for j in range(8):
        unpack_bf16(a, 16, 17, 8 + j)
        a(f"ds_write_b32 v44, v16 offset:{(2*j)*32}")
        a(f"ds_write_b32 v44, v17 offset:{(2*j+1)*32}")
    a("""
    s_cmp_lg_u32 s2, 0
    s_cbranch_scc1 Lk5_noidx
    v_cmp_gt_u32 vcc, 8, v0
    s_and_saveexec_b64 s[56:57], vcc
    s_cbranch_execz Lk5_noidx2
    """)
    a("v_mov_b32 v7, s40")
    for t in range(1, 8):
        a(f"v_cmp_eq_u32 vcc, {t}, v0")
        a(f"v_mov_b32 v45, s{40+t}")
        a("s_nop 0")
        a(f"v_cndmask_b32 v7, v7, v45, vcc")
    a(f"""
    v_lshlrev_b32 v45, 2, v7
    buffer_load_dword v46, v45, s[20:23], 0 offen
    v_lshlrev_b32 v45, 2, v0
    buffer_store_dword v7, v45, s[32:35], 0 offen
    s_waitcnt vmcnt(0)
    s_mov_b32 s36, {LOG2E:#x}
    v_mul_f32 v46, s36, v46
    v_exp_f32 v46, -v46
    s_nop 0
    v_add_f32 v46, 1.0, v46
    v_rcp_f32 v46, v46
    s_nop 0
    """)
    round_bf16(a, 46, 46)
    a("buffer_store_dword v46, v45, s[32:35], 0 offen offset:32")
    a.label("Lk5_noidx2")
    a("s_mov_b64 exec, -1")
    a.label("Lk5_noidx")
    a("""
    s_waitcnt lgkmcnt(0)
    s_barrier
    v_lshlrev_b32 v44, 10, v3         ; ks*32*32
    """)
    for i in range(32):
        a(f"v_mov_b32 v{64+i}, 0")
    for kk in range(32):
        xb = 8 + 8 * (kk % 2)
        if kk == 0:
            a(f"ds_read_b128 v[{xb}:{xb+3}], v44")
            a(f"ds_read_b128 v[{xb+4}:{xb+7}], v44 offset:16")
        if kk + 1 < 32:
            xn = 8 + 8 * ((kk + 1) % 2)
            a(f"ds_read_b128 v[{xn}:{xn+3}], v44 offset:{(kk+1)*32}")
            a(f"ds_read_b128 v[{xn+4}:{xn+7}], v44 offset:{(kk+1)*32+16}")
            a("s_waitcnt lgkmcnt(2)")
        else:
            a("s_waitcnt lgkmcnt(0)")
        unpack_bf16(a, 24, 25, 128 + kk)
        unpack_bf16(a, 26, 27, 160 + kk)
        for t in range(8):
            for c in range(4):
                a(f"v_fmac_f32 v{64+4*t+c}, v{xb+t}, v{24+c}")
    a("""
    v_lshlrev_b32 v44, 11, v3
    v_lshlrev_b32 v45, 4, v2
    v_add_u32 v44, v44, v45
    """)
    for t in range(8):
        a(f"ds_write_b128 v44, v[{64+4*t}:{67+4*t}] offset:{16384 + t*256}")
    a("""
    s_waitcnt lgkmcnt(0)
    s_barrier
    v_lshlrev_b32 v44, 8, v5
    v_lshrrev_b32 v45, 1, v6
    v_lshlrev_b32 v45, 4, v45
    v_add_u32 v44, v44, v45
    v_and_b32 v45, 1, v6
    v_lshlrev_b32 v45, 2, v45
    v_add_u32 v44, v44, v45
    """)
    for ks in range(16):
        a(f"ds_read_b32 v{64+ks}, v44 offset:{16384 + ks*2048}")
        a(f"ds_read_b32 v{80+ks}, v44 offset:{16384 + ks*2048 + 8}")
    a("s_waitcnt lgkmcnt(0)")
    for ks in range(1, 16):
        a(f"v_add_f32 v64, v64, v{64+ks}")
        a(f"v_add_f32 v80, v80, v{80+ks}")
    round_bf16(a, 64, 64)
    round_bf16(a, 80, 80)
    a(f"""
    s_mov_b32 s36, {LOG2E:#x}
    v_mul_f32 v65, s36, v64
    v_exp_f32 v65, -v65
    s_nop 0
    v_add_f32 v65, 1.0, v65
    v_rcp_f32 v65, v65
    s_nop 0
    v_mul_f32 v64, v64, v65
    """)
    round_bf16(a, 64, 64)
    a("""
    v_mul_f32 v64, v64, v80
    v_cvt_pk_bf16_f32 v64, v64, v64
    v_lshlrev_b32 v44, 4, v6
    v_lshlrev_b32 v45, 1, v5
    v_add_u32 v44, v44, v45
    s_lshl_b32 s37, s2, 9
    buffer_store_short v64, v44, s[28:31], s37 offen
    """)
    a.label("Lk5_end")
    a("s_endpgm")
    return kernel_desc("moe1_kernel", 192, sgpr=64)

def gen_k6(a):
    kernel_begin(a, "moe2_kernel")
    a("""
    s_cmp_ge_u32 s2, 32
    s_cbranch_scc1 Lk6_end
    s_load_dwordx2 s[4:5], s[0:1], 72     ; w_down
    s_load_dwordx2 s[8:9], s[0:1], 112    ; ws
    s_load_dwordx2 s[10:11], s[0:1], 96   ; out
    v_and_b32 v2, 7, v0               ; cp
    v_lshrrev_b32 v3, 3, v0
    s_mov_b32 s36, 57344
    v_mul_lo_u32 v4, v3, s36          ; ks*56*1024
    v_lshlrev_b32 v5, 2, v2
    v_add_u32 v4, v4, v5
    s_mov_b32 s36, 896
    v_mul_lo_u32 v6, v3, s36          ; ks*56*16
    s_lshl_b32 s37, s2, 5
    s_waitcnt lgkmcnt(0)
    """)
    srd(a, 12, 4, 1792 * 512 * 2)
    srd(a, 16, 8, 1792 * 8 * 2, WS_ACT)
    srd(a, 20, 8, 64, WS_IDX)
    srd(a, 24, 8, 2048 * 512 * 2, WS_H2)
    srd(a, 28, 8, 2048 * 512 * 2, WS_X2)
    srd(a, 32, 10, 2048 * 512 * 2)
    srd(a, 40, 8, 3072 * 4, WS_MOD)
    for i in range(16):
        a(f"v_mov_b32 v{64+i}, 0")
    for half in range(2):
        for kk in range(28):
            f = half * 28 + kk
            a(f"buffer_load_dword v{96+kk}, v4, s[12:15], s37 offen")
            a("s_add_u32 s37, s37, 1024")
            a(f"buffer_load_dwordx4 v[{128+4*kk}:{131+4*kk}], v6, s[16:19], 0 offen offset:{f*16}")
        for kk in range(28):
            a(f"s_waitcnt vmcnt({2*(27-kk)})")
            unpack_bf16(a, 8, 9, 96 + kk)
            for j in range(4):
                unpack_bf16(a, 10, 11, 128 + 4 * kk + j)
                a(f"v_fmac_f32 v{64+4*j}, v10, v8")
                a(f"v_fmac_f32 v{65+4*j}, v10, v9")
                a(f"v_fmac_f32 v{66+4*j}, v11, v8")
                a(f"v_fmac_f32 v{67+4*j}, v11, v9")
    a("""
    v_lshlrev_b32 v8, 9, v3
    v_lshlrev_b32 v9, 6, v2
    v_add_u32 v8, v8, v9
    """)
    for j in range(4):
        a(f"ds_write_b128 v8, v[{64+4*j}:{67+4*j}] offset:{16*j}")
    a("""
    s_waitcnt lgkmcnt(0)
    s_barrier
    v_cmp_gt_u32 vcc, 128, v0
    s_and_saveexec_b64 s[44:45], vcc
    s_cbranch_execz Lk6_end
    v_lshrrev_b32 v2, 4, v0           ; tok
    v_and_b32 v3, 15, v0              ; col
    v_lshrrev_b32 v8, 1, v3
    v_lshlrev_b32 v8, 6, v8
    v_lshlrev_b32 v9, 3, v2
    v_add_u32 v8, v8, v9
    v_and_b32 v9, 1, v3
    v_lshlrev_b32 v9, 2, v9
    v_add_u32 v8, v8, v9
    v_lshlrev_b32 v9, 2, v2
    buffer_load_dword v10, v9, s[20:23], 0 offen            ; idx
    buffer_load_dword v11, v9, s[20:23], 0 offen offset:32  ; rsel
    s_lshl_b32 s37, s2, 4
    v_add_u32 v12, s37, v3
    v_lshlrev_b32 v13, 2, v12
    s_mov_b32 s36, 10240
    buffer_load_dword v14, v13, s[40:43], s36 offen         ; gb
    """)
    for ks in range(32):
        a(f"ds_read_b32 v{64+ks}, v8 offset:{ks*512}")
    a("""
    s_waitcnt vmcnt(0)
    v_lshlrev_b32 v10, 10, v10
    v_lshlrev_b32 v13, 1, v12
    v_add_u32 v10, v10, v13
    buffer_load_ushort v15, v10, s[24:27], 0 offen          ; h2
    buffer_load_ushort v16, v10, s[28:31], 0 offen          ; x2
    s_waitcnt lgkmcnt(0)
    """)
    for ks in range(1, 32):
        a(f"v_add_f32 v64, v64, v{64+ks}")
    round_bf16(a, 64, 64)
    a("v_mul_f32 v64, v64, v11")
    round_bf16(a, 64, 64)
    a("""
    s_waitcnt vmcnt(0)
    v_lshlrev_b32 v15, 16, v15
    v_lshlrev_b32 v16, 16, v16
    v_add_f32 v64, v64, v15
    """)
    round_bf16(a, 64, 64)
    a("v_mul_f32 v64, v64, v14")
    round_bf16(a, 64, 64)
    a("""
    v_add_f32 v64, v64, v16
    v_cvt_pk_bf16_f32 v64, v64, v64
    buffer_store_short v64, v10, s[32:35], 0 offen
    """)
    a.label("Lk6_end")
    a("s_endpgm")
    return kernel_desc("moe2_kernel", 240, sgpr=64)

def rest_kernels():
    return [(gen_oproj2.gen_oproj2, "oproj_kernel", 256, 320, 122880),
            (gen_pm.gen_postmoe, "pm_kernel", 56 + gen_pm.NPOST, 1024, 107520)]
```

```python
from genlib import *
from gen_small import *
import struct, os
XF = set(os.environ.get('XF', '').split(','))

def f32hex(x):
    return struct.unpack("<I", struct.pack("<f", x))[0]

SCALE_C = (128 ** -0.5) * 1.4426950408889634
THR = 5.5 if 'novalu' not in XF else 1e30

V_KA = 1
V_VA = 9
V_KDMA = 13
V_VDMA = 14
V_MTHR = 15
V_NMC = 16
V_F = 17
V_L = 18
V_M = 143
V_MX = 141
USE_PK = False
V_T = 20
V_RING = 24
NRING = 8
V_P = 56
V_S = [72, 104]
V_PA = 136
V_WDMA = 140
V_HOFF = 141
V_LANE16 = 142
V_HX = 144
A_Q = 0
A_O = 32
NVGPR = 160
NAGPR = 96
V_SEL = 144
V_LA = 148
MSUM = 'nomsum' not in XF

KSLOT = [i * 16384 for i in range(4)]
VSLOT = [65536 + i * 16384 for i in range(4)]

S_HEAD = 3; S_QB = 4; S_W = 5; S_W1K = 6
S_SRDK = 8; S_SRDV = 12; S_SRDW = 16; S_SRDH = 20; S_SRDO = 24
S_KOFF = 28; S_VOFF = 29; S_T0 = 30; S_T1 = 31; S_CNT = 32; S_C = 33; S_T2 = 34; S_SCALE = 46; S_L2E = 44; S_FLAG = 35

def ring(g):
    b = V_RING + 4 * (g % NRING)
    return b

def dma(a, srdreg, voff, soff_sgpr, extra, ldsaddr):
    a(f"s_add_u32 m0, s{S_W1K}, {ldsaddr}")
    if extra:
        a(f"s_add_u32 s{S_T0}, s{soff_sgpr}, {extra}")
        so = S_T0
    else:
        a("s_nop 0")
        so = soff_sgpr
    a(f"buffer_load_dwordx4 v{voff}, s[{srdreg}:{srdreg+3}], s{so} offen lds")

def dma_k(a, slot):
    dma(a, S_SRDK, V_KDMA, S_KOFF, 0, KSLOT[slot])
    dma(a, S_SRDK, V_KDMA, S_KOFF, 8192, KSLOT[slot] + 8192)
    a(f"s_add_u32 s{S_KOFF}, s{S_KOFF}, 16384")

def dma_v(a, slot):
    dma(a, S_SRDV, V_VDMA, S_VOFF, 0, VSLOT[slot])
    dma(a, S_SRDV, V_VDMA, S_VOFF, 8192, VSLOT[slot] + 8192)
    a(f"s_add_u32 s{S_VOFF}, s{S_VOFF}, 16384")

class Stream:
    pass

def kread(g, slot, kb, ks):
    if 'nolds' in XF: return []
    if 'halflds' in XF and (g & 1): return []
    b = ring(g)
    return [f"ds_read_b128 v[{b}:{b+3}], v{V_KA+ks} offset:{KSLOT[slot] + kb*8192}"]

def vread(g, slot, s, t):
    if 'nolds' in XF: return []
    if 'halflds' in XF and (g & 1): return []
    b = ring(g)
    off = VSLOT[slot] - 65536 + s * 4096
    return [f"ds_read_b64_tr_b16 v[{b}:{b+1}], v{V_VA+t} offset:{off}",
            f"ds_read_b64_tr_b16 v[{b+2}:{b+3}], v{V_VA+t} offset:{off+2048}"]

def wread(g, ldsbase, s, t):
    b = ring(g)
    off = ldsbase + s * 4096
    ar = V_PA + t
    if off >= 65536:
        off -= 65536; ar = 15 + t
    return [f"ds_read_b64_tr_b16 v[{b}:{b+1}], v{ar} offset:{off}",
            f"ds_read_b64_tr_b16 v[{b+2}:{b+3}], v{ar} offset:{off+1024}"]

def hfrag(ks):
    if ks < 16: return f"a[{A_O+4*ks}:{A_O+4*ks+3}]"
    if ks < 24: return f"a[{A_Q+4*(ks-16)}:{A_Q+4*(ks-16)+3}]"
    if ks < 28: return f"v[{V_P+4*(ks-24)}:{V_P+4*(ks-24)+3}]"
    return f"v[{V_HX+4*(ks-28)}:{V_HX+4*(ks-28)+3}]"

def emit_seq(a, items, pre_issued, fillers, tail_reads):
    D = NRING
    allreads = [r for (_, r) in items] + tail_reads
    n = len(items)
    issued = pre_issued
    while issued < min(D, len(allreads)):
        for r in allreads[issued]: a(r)
        issued += 1
    for i in range(n):
        cnt = sum(len(allreads[k]) for k in range(i + 1, issued))
        if 'nowait' not in XF: a(f"s_waitcnt lgkmcnt({cnt})")
        if 'm16' in XF and 'v_mfma_f32_32x32x16' in items[i][0]:
            import re
            m = re.match(r"v_mfma_f32_32x32x16_bf16 ([av])\[(\d+):\d+\], (\S+), (\S+), (.*)", items[i][0])
            ty, d0, A, B, C = m.group(1), int(m.group(2)), m.group(3), m.group(4), m.group(5)
            for h in range(2):
                dd = d0 + 4 * h
                cc = "0" if C == "0" else f"{ty}[{dd}:{dd+3}]"
                a(f"v_mfma_f32_16x16x32_bf16 {ty}[{dd}:{dd+3}], {A} {B} {cc}")
        else:
            a(items[i][0])
        if issued < len(allreads) and issued == i + D:
            for r in allreads[issued]: a(r)
            issued += 1
        for f in fillers.get(i, []):
            a(f)
    return issued - n

def gen_k2(a):
    kernel_begin(a, "attn_kernel")
    a(f"""
    s_cmp_ge_u32 s2, 256
    s_cbranch_scc1 Lk2_end
    s_load_dwordx2 s[36:37], s[0:1], 8      ; K
    s_load_dwordx2 s[38:39], s[0:1], 16     ; V
    s_load_dwordx2 s[40:41], s[0:1], 24     ; wq
    s_load_dwordx2 s[42:43], s[0:1], 112    ; ws
    s_load_dwordx2 s[64:65], s[0:1], 32     ; wo
    s_load_dwordx4 s[68:71], s[0:1], 56
    s_load_dwordx2 s[66:67], s[0:1], 72     ; down
    s_and_b32 s{S_HEAD}, s2, 7
    s_lshr_b32 s{S_T0}, s2, 6
    s_lshl_b32 s{S_T0}, s{S_T0}, 3
    s_or_b32 s{S_HEAD}, s{S_HEAD}, s{S_T0}
    s_lshr_b32 s{S_QB}, s2, 3
    s_and_b32 s{S_QB}, s{S_QB}, 7
    v_lshrrev_b32 v1, 6, v0
    s_nop 0
    v_readfirstlane_b32 s{S_W}, v1
    v_and_b32 v0, 63, v0
    s_lshl_b32 s{S_W1K}, s{S_W}, 10
    s_mov_b32 s{S_C}, {f32hex(SCALE_C):#x}
    s_mov_b32 s{S_SCALE}, {f32hex(128 ** -0.5):#x}
    s_mov_b32 s{S_L2E}, {f32hex(1.4426950408889634):#x}
    """)
    if 'stamp' in XF:
        a("s_memtime s[48:49]")
    if 'stamp' in XF: a("s_memrealtime s[60:61]")
    a(f"""
    v_lshlrev_b32 v{V_LANE16}, 4, v0
    v_lshrrev_b32 v20, 4, v0            ; i>>4 (0..3)
    v_and_b32 v21, 15, v0               ; i&15
    s_lshl_b32 s{S_T0}, s{S_W}, 2
    v_add_u32 v22, s{S_T0}, v20
    v_and_b32 v22, 15, v22
    v_xor_b32 v22, v22, v21
    v_lshlrev_b32 v22, 4, v22
    v_lshlrev_b32 v23, 8, v20
    v_add_u32 v22, v22, v23
    v_add_u32 v{V_KDMA}, s{S_W1K}, v22
    v_lshlrev_b32 v22, 2, v20
    v_xor_b32 v22, v22, v21
    v_lshlrev_b32 v22, 4, v22
    v_add_u32 v{V_VDMA}, v22, v23
    v_add_u32 v{V_VDMA}, s{S_W1K}, v{V_VDMA}
    v_lshlrev_b32 v23, 13, v20
    v_add_u32 v{V_WDMA}, v22, v23
    s_lshl_b32 s{S_T0}, s{S_W}, 15
    v_add_u32 v{V_WDMA}, s{S_T0}, v{V_WDMA}
    v_and_b32 v20, 31, v0
    v_lshlrev_b32 v20, 8, v20
    v_lshrrev_b32 v22, 5, v0
    v_xor_b32 v23, v22, v21
    v_lshlrev_b32 v23, 4, v23
    v_add_u32 v{V_KA}, v20, v23
    """)
    for ks in range(1, 8):
        a(f"v_xor_b32 v{V_KA+ks}, {ks*32}, v{V_KA}")
    a(f"""
    v_lshrrev_b32 v20, 2, v21           ; r
    v_lshrrev_b32 v23, 4, v0
    v_and_b32 v23, 1, v23
    v_lshlrev_b32 v23, 5, v23           ; 32g
    v_and_b32 v21, 3, v0
    v_lshlrev_b32 v21, 3, v21           ; 8c
    v_add_u32 v21, v21, v23             ; 32g+8c
    v_lshlrev_b32 v23, 8, v20           ; r*256
    v_add_u32 v21, v21, v23             ; r*256+32g+8c
    v_lshlrev_b32 v23, 10, v22          ; u*1024
    """)
    for t in range(4):
        a(f"v_xor_b32 v{V_VA+t}, {t}, v20")
        a(f"v_lshlrev_b32 v{V_VA+t}, 6, v{V_VA+t}")
        a(f"v_add_u32 v{V_VA+t}, v{V_VA+t}, v21")
        a(f"v_add_u32 v{V_VA+t}, v{V_VA+t}, v23")
        a(f"v_add_u32 v{V_PA+t}, v{V_VA+t}, v23")
        a(f"v_add_u32 v{V_VA+t}, 0x10000, v{V_VA+t}")
        a(f"v_add_u32 v{15+t}, 0x10000, v{V_PA+t}")
    a("s_waitcnt lgkmcnt(0)")
    a(f"""
    s_lshl_b32 s{S_T0}, s{S_HEAD}, 19
    s_add_u32 s{S_SRDK}, s36, s{S_T0}
    s_addc_u32 s{S_SRDK+1}, s37, 0
    s_mov_b32 s{S_SRDK+2}, 0x80000
    s_mov_b32 s{S_SRDK+3}, 0x00020000
    s_add_u32 s{S_SRDV}, s38, s{S_T0}
    s_addc_u32 s{S_SRDV+1}, s39, 0
    s_mov_b32 s{S_SRDV+2}, 0x80000
    s_mov_b32 s{S_SRDV+3}, 0x00020000
    s_lshl_b32 s{S_T0}, s{S_HEAD}, 8
    s_add_u32 s{S_SRDW}, s40, s{S_T0}
    s_addc_u32 s{S_SRDW+1}, s41, 0
    s_sub_u32 s{S_SRDW+2}, 0x400000, s{S_T0}
    s_mov_b32 s{S_SRDW+3}, 0x00020000
    """)
    a(f"""
    s_lshl_b32 s76, s2, 3
    s_add_u32 s76, s76, s{S_W}            ; gw
    s_mov_b32 s72, s64
    s_mov_b32 s73, s65
    s_mov_b32 s74, 0x400000
    s_mov_b32 s75, 0x00020000
    s_lshl_b32 s77, s76, 13
    s_cmp_ge_u32 s76, 512
    s_cselect_b32 s72, s68, s72
    s_cselect_b32 s73, s69, s73
    s_cselect_b32 s74, 0x1c0000, s74
    s_cselect_b32 s78, 0x400000, 0
    s_cmp_ge_u32 s76, 736
    s_cselect_b32 s72, s70, s72
    s_cselect_b32 s73, s71, s73
    s_cselect_b32 s78, 0x5c0000, s78
    s_cmp_ge_u32 s76, 960
    s_cselect_b32 s72, s66, s72
    s_cselect_b32 s73, s67, s73
    s_cselect_b32 s78, 0x780000, s78
    s_sub_u32 s77, s77, s78
    """)
    srd(a, S_SRDH, 42, 2048 * 512 * 2, WS_H1F)
    srd(a, S_SRDO, 42, 2048 * 4096 * 2, WS_OF)
    wslot = [KSLOT[0], KSLOT[1], KSLOT[2], VSLOT[0], VSLOT[1], KSLOT[3], VSLOT[2], VSLOT[3]]
    a(f"s_mov_b32 s{S_T1}, 0")
    if 'wqlin' in XF:
        a(f"s_lshl_b32 s{S_T1}, s{S_HEAD}, 16")
    def dma_w(c):
        if 'wqlin' in XF:
            dma(a, S_SRDW, V_VDMA, S_T1, 0, wslot[c])
            dma(a, S_SRDW, V_VDMA, S_T1, 8192, wslot[c] + 8192)
            a(f"s_add_u32 s{S_T1}, s{S_T1}, 16384")
            return
        dma(a, S_SRDW, V_WDMA, S_T1, 0, wslot[c])
        dma(a, S_SRDW, V_WDMA, S_T1, 262144, wslot[c] + 8192)
        a(f"s_add_u32 s{S_T1}, s{S_T1}, 524288")
    a(f"""
    s_lshl_b32 s{S_T2}, s{S_QB}, 3
    s_add_u32 s{S_T2}, s{S_T2}, s{S_W}
    s_lshl_b32 s{S_T2}, s{S_T2}, 15
    """)
    def chunk_loads(c):
        groups = []
        a2 = Asm()
        sav = a.lines; a.lines = a2.lines
        dma_w(c)
        a.lines = sav
        L = [l.strip() for l in a2.lines]
        groups.append(L[0:3]); groups.append(L[3:])
        for ks in range(4 * c, 4 * c + 4):
            g_ = [f"buffer_load_dwordx4 {hfrag(ks)}, v{V_LANE16}, s[{S_SRDH}:{S_SRDH+3}], s{S_T2} offen offset:{(ks%4)*1024}"]
            if ks % 4 == 3: g_.append(f"s_add_u32 s{S_T2}, s{S_T2}, 4096")
            groups.append(g_)
        return groups
    for c in range(3):
        for g_ in chunk_loads(c):
            for t in g_: a(t)
    a(f"s_mov_b32 s{S_KOFF}, 0")
    a(f"s_mov_b32 s{S_VOFF}, 0")
    if 'stamp' in XF:
        a("s_memtime s[50:51]")
    kvq = [('k', 0), ('k', 1), ('k', 2), ('v', 0), ('v', 1), ('k', 3), ('v', 2)]
    a("s_waitcnt vmcnt(6)")
    a("s_barrier")
    g = 0
    items = []
    fill = {}
    for c in range(8):
        for s_ in range(4):
            for t in range(4):
                d = V_S[0] + 16 * t
                first = (c == 0 and s_ == 0)
                csrc = "0" if first else f"v[{d}:{d+15}]"
                b = ring(g)
                items.append((f"v_mfma_f32_32x32x16_bf16 v[{d}:{d+15}], v[{b}:{b+3}], {hfrag(4*c+s_)}, {csrc}",
                              wread(g, wslot[c], s_, t)))
                g += 1
        nops = 0
        pos = 16 * c
        if c >= 1:
            a2 = Asm()
            kind, sl = kvq[c - 1]
            (dma_k if kind == 'k' else dma_v)(a2, sl)
            L = [l.strip() for l in a2.lines]
            fill[pos] = L[0:3]; fill[pos + 1] = L[3:]
            nops += 2
        if c + 3 < 8:
            for k, g_ in enumerate(chunk_loads(c + 3)):
                fill[pos + 2 + 2 * k] = g_
            nops += 6
        if c < 7:
            fill[pos + 15] = [f"s_waitcnt vmcnt({nops})", "s_barrier"]
    emit_seq(a, items, 0, fill, [])
    if 'stamp' in XF:
        a("s_memtime s[52:53]")
    a("s_nop 15")
    for t in range(4):
        for hh in range(2):
            base = V_S[0] + 16 * t + 8 * hh
            a(f"v_cvt_pk_bf16_f32 v20, v{base}, v{base+1}")
            a(f"v_cvt_pk_bf16_f32 v21, v{base+2}, v{base+3}")
            a(f"v_cvt_pk_bf16_f32 v22, v{base+4}, v{base+5}")
            a(f"v_cvt_pk_bf16_f32 v23, v{base+6}, v{base+7}")
            a("s_nop 1")
            a("v_permlane32_swap_b32 v20, v22")
            a("v_permlane32_swap_b32 v21, v23")
            a("s_nop 1")
            ks = 2 * t + hh
            for x in range(4):
                a(f"v_accvgpr_write_b32 a{A_Q+4*ks+x}, v{20+x}")
    for i in range(64):
        a(f"v_accvgpr_write_b32 a{A_O+i}, 0")
    a(f"""
    v_mov_b32 v{V_M}, 0xff800000
    v_mov_b32 v{V_MTHR}, 0xff800000
    v_mov_b32 v{V_L}, 0
    v_mov_b32 v{V_L+1}, 0
    v_mov_b32 v{V_NMC}, 0
    v_lshrrev_b32 v20, 4, v0
    v_xor_b32 v20, v20, v0
    v_and_b32 v20, 1, v20
    v_cmp_eq_u32 vcc, 0, v20
    v_mov_b32 v21, 0x3f803f80
    s_nop 1
    v_cndmask_b32 v{V_SEL}, 0, v21, vcc
    v_cndmask_b32 v{V_SEL+1}, 0, v21, vcc
    v_cndmask_b32 v{V_SEL+2}, 0, v21, vcc
    v_cndmask_b32 v{V_SEL+3}, 0, v21, vcc
    v_mov_b32 v{V_LA}, 0
    v_mov_b32 v{V_LA+1}, 0
    v_mov_b32 v{V_LA+2}, 0
    v_mov_b32 v{V_LA+3}, 0
    s_waitcnt vmcnt(10)
    s_barrier
    """)

    gctr = [0]
    def qk_items(tile, sdst):
        items = []
        order = [(kb, ks) for kb in range(2) for ks in range(8)]
        if 'qkorder' in XF: order = [(kb, ks) for ks in range(8) for kb in range(2)]
        for (kb, ks) in order:
            if True:
                d = V_S[sdst] + 16 * kb
                csrc = "0" if ks == 0 else f"v[{d}:{d+15}]"
                gg = gctr[0]; gctr[0] += 1
                b = ring(gg)
                items.append((f"v_mfma_f32_32x32x16_bf16 v[{d}:{d+15}], v[{b}:{b+3}], a[{A_Q+4*ks}:{A_Q+4*ks+3}], {csrc}",
                              kread(gg, tile % 4, kb, ks)))
        return items
    def pv_items(tile):
        items = []
        for s in range(4):
            for t in range(4):
                d = A_O + 16 * t
                gg = gctr[0]; gctr[0] += 1
                b = ring(gg)
                items.append((f"v_mfma_f32_32x32x16_bf16 a[{d}:{d+15}], v[{b}:{b+3}], v[{V_P+4*s}:{V_P+4*s+3}], a[{d}:{d+15}]",
                              vread(gg, tile % 4, s, t)))
        return items
    def peek_k_reads(tile):
        save = gctr[0]
        it = qk_items(tile, 0)
        gctr[0] = save
        return [r for (_, r) in it[:NRING]]

    def prep_ops(sreg, pairs):
        b = V_S[sreg]
        ops = []
        n = len(pairs)
        for k in range(n + 3):
            if k < n:
                i = pairs[k]
                ops.append((f"v_cvt_pk_bf16_f32 v{b+2*i}, 0, v{b+2*i}", 1))
                ops.append((f"v_cvt_pk_bf16_f32 v{b+2*i+1}, 0, v{b+2*i+1}", 1))
            if 0 <= k - 1 < n:
                i = pairs[k - 1]
                if USE_PK:
                    ops.append((f"v_pk_mul_f32 v[{b+2*i}:{b+2*i+1}], v[{b+2*i}:{b+2*i+1}], s[{S_SCALE}:{S_SCALE+1}] op_sel_hi:[1,0]", 1))
                else:
                    ops.append((f"v_mul_f32 v{b+2*i}, s{S_SCALE}, v{b+2*i}", 1))
                    ops.append((f"v_mul_f32 v{b+2*i+1}, s{S_SCALE}, v{b+2*i+1}", 1))
            if 0 <= k - 2 < n:
                i = pairs[k - 2]
                ops.append((f"v_cvt_pk_bf16_f32 v{b+2*i}, 0, v{b+2*i}", 1))
                ops.append((f"v_cvt_pk_bf16_f32 v{b+2*i+1}, 0, v{b+2*i+1}", 1))
            if 0 <= k - 3 < n:
                i = pairs[k - 3]
                if i == 0:
                    ops.append((f"v_max_f32 v{V_MX}, v{b}, v{b+1}", 1))
                else:
                    ops.append((f"v_max3_f32 v{V_MX}, v{V_MX}, v{b+2*i}, v{b+2*i+1}", 1))
        return ops

    def post_ops(sreg):
        b = V_S[sreg]
        ops = []
        for k in range(16 + 2):
            if k < 16:
                i = k
                if USE_PK:
                    ops.append((f"v_pk_fma_f32 v[{b+2*i}:{b+2*i+1}], v[{b+2*i}:{b+2*i+1}], s[{S_L2E}:{S_L2E+1}], v[{V_NMC}:{V_NMC+1}] op_sel_hi:[1,0,0]", 1))
                else:
                    ops.append((f"v_fma_f32 v{b+2*i}, v{b+2*i}, s{S_L2E}, v{V_NMC}", 1))
                    ops.append((f"v_fma_f32 v{b+2*i+1}, v{b+2*i+1}, s{S_L2E}, v{V_NMC}", 1))
            if 0 <= k - 1 < 16:
                i = k - 1
                ops.append((f"v_exp_f32 v{b+2*i}, v{b+2*i}", 2))
                ops.append((f"v_exp_f32 v{b+2*i+1}, v{b+2*i+1}", 2))
            if 0 <= k - 2 < 16:
                i = k - 2
                if USE_PK:
                    ops.append((f"v_pk_add_f32 v[{V_L}:{V_L+1}], v[{V_L}:{V_L+1}], v[{b+2*i}:{b+2*i+1}]", 1))
                elif not MSUM:
                    ops.append((f"v_add_f32 v{V_L}, v{V_L}, v{b+2*i}", 1))
                    ops.append((f"v_add_f32 v{V_L+1}, v{V_L+1}, v{b+2*i+1}", 1))
                ops.append((f"v_cvt_pk_bf16_f32 v{V_P+i}, v{b+2*i}, v{b+2*i+1}", 1))
        return ops

    def spread(ops, nslots):
        if 'novalu' in XF: ops = [(t, w) for (t, w) in ops if 'v_max' in t]
        if 'noexp' in XF: ops = [(t.replace('v_exp_f32', 'v_mov_b32'), w) for (t, w) in ops]
        if 'nocvt' in XF: ops = [(t, w) for (t, w) in ops if not ('v_cvt_pk' in t and ', 0, ' in t)]
        tot = sum(w for _, w in ops)
        out = [[] for _ in range(nslots)]
        acc = 0
        for t, w in ops:
            k = min(nslots - 1, int((acc + w / 2) * nslots / tot))
            out[k].append(t)
            acc += w
        return out

    NPOST_B = 6
    PREP0 = 10

    def rare1(lbl_rare, lbl_back):
        r = [f"{lbl_rare}:"]
        body = f"""
        v_max_f32 v{V_MX}, v{V_MX}, v{V_M}
        v_mov_b32 v20, v{V_MX}
        v_mov_b32 v21, v{V_MX}
        s_nop 1
        v_permlane32_swap_b32 v20, v21
        s_nop 1
        v_max_f32 v{V_MX}, v20, v21
        v_sub_f32 v20, v{V_M}, v{V_MX}
        v_mul_f32 v20, s{S_L2E}, v20
        v_exp_f32 v{V_F}, v20
        v_mov_b32 v{V_M}, v{V_MX}
        v_mul_f32 v{V_NMC}, s{S_L2E}, v{V_MX}
        v_sub_f32 v{V_NMC}, 0, v{V_NMC}
        v_add_f32 v{V_MTHR}, {f32hex(THR):#x}, v{V_MX}
        v_mul_f32 v{V_L}, v{V_L}, v{V_F}
        v_mul_f32 v{V_L+1}, v{V_L+1}, v{V_F}
        s_mov_b32 s{S_FLAG}, 1
        s_branch {lbl_back}
        """
        r += ["    " + l.strip() for l in body.strip().split("\n")]
        return r
    def rare2(lbl_rare, lbl_back):
        r = [f"{lbl_rare}:", "    s_nop 15"]
        for i in range(64):
            r.append(f"    v_accvgpr_read_b32 v21, a{A_O+i}")
            r.append(f"    v_mul_f32 v21, v21, v{V_F}")
            r.append(f"    v_accvgpr_write_b32 a{A_O+i}, v21")
        if MSUM:
            r += [f"    v_mov_b32 v20, v{V_F}", f"    v_mov_b32 v21, v{V_F}", "    s_nop 1",
                  "    v_permlane16_swap_b32 v20, v21", "    s_nop 1",
                  f"    v_mul_f32 v{V_LA}, v{V_LA}, v20", f"    v_mul_f32 v{V_LA+1}, v{V_LA+1}, v21",
                  f"    v_mul_f32 v{V_LA+2}, v{V_LA+2}, v20", f"    v_mul_f32 v{V_LA+3}, v{V_LA+3}, v21"]
        r.append(f"    s_mov_b32 s{S_FLAG}, 0")
        r.append("    s_nop 1")
        r.append(f"    s_branch {lbl_back}")
        return r

    rare_blocks = []
    def check1():
        lr = a.newlabel("rareA"); lb = a.newlabel("backA")
        rare_blocks.extend(rare1(lr, lb))
        return [f"v_cmp_gt_f32 vcc, v{V_MX}, v{V_MTHR}", f"s_cbranch_vccnz {lr}", f"{lb}:"]
    def check2():
        lr = a.newlabel("rareB"); lb = a.newlabel("backB")
        rare_blocks.extend(rare2(lr, lb))
        return [f"s_cmp_lg_u32 s{S_FLAG}, 0", f"s_cbranch_scc1 {lr}", f"{lb}:"]

    a(f"s_mov_b32 s{S_FLAG}, 0")
    items = qk_items(0, 0)
    pre = emit_seq(a, items, 0, {}, peek_k_reads(1))
    a("s_nop 15")
    for t, w in prep_ops(0, list(range(16))): a(t)
    for t in check1(): a(t)
    a(f"s_mov_b32 s{S_FLAG}, 0")
    for gl in spread(post_ops(0), 16)[:NPOST_B]:
        for t in gl: a(t)

    def iteration(j, pre, last=False, vm=4, do_k=True, do_v=True):
        scur = j & 1; snxt = 1 - scur
        a(f"s_waitcnt vmcnt({vm})")
        if 'nobar' not in XF: a("s_barrier")
        if 'nodma' in XF: do_k = do_v = False
        postc = spread(post_ops(scur), 16)[NPOST_B:]
        if not last:
            fill = {i: [] for i in range(32)}
            for k, gl in enumerate(postc): fill[k] += gl
            nprep = 32 - NPOST_B - PREP0
            p0 = spread(prep_ops(snxt, list(range(8))), nprep // 2)
            p1 = spread(prep_ops(snxt, list(range(8, 16))), nprep - nprep // 2)
            for k, gl in enumerate(p0 + p1): fill[PREP0 + k] += gl
            fill[32 - NPOST_B - 1] += check1()
            for k, gl in enumerate(spread(post_ops(snxt), 16)[:NPOST_B]): fill[32 - NPOST_B + k] += gl
            if MSUM:
                for s_ in range(4):
                    fill[16 + 4 * s_ + 1] = [f"v_mfma_f32_16x16x32_bf16 v[{V_LA}:{V_LA+3}], v[{V_SEL}:{V_SEL+3}], v[{V_P+4*s_}:{V_P+4*s_+3}], v[{V_LA}:{V_LA+3}]"] + fill[16 + 4 * s_ + 1]
            fill[31] += check2()
            a2 = Asm()
            if do_k: dma_k(a2, j % 4)
            fill[1] = fill[1] + [l.strip() for l in a2.lines]
            a2 = Asm()
            if do_v: dma_v(a2, (j + 3) % 4)
            fill[6] = fill[6] + [l.strip() for l in a2.lines]
            if j == 28:
                fill[9] = fill[9] + [f"v_lshlrev_b32 v153, 3, v{V_LANE16}", "buffer_load_dword v152, v153, s[72:75], s77 offen"]
            def prio(lo, hi):
                l1 = a.newlabel("pr"); l2 = a.newlabel("pr")
                return [f"s_cmp_lt_u32 s{S_W}, 4", f"s_cbranch_scc0 {l1}", f"s_setprio {lo}", f"s_branch {l2}", f"{l1}:", f"s_setprio {hi}", f"{l2}:"]
            if 'noprio' not in XF:
                fill[0] = prio(2, 1) + fill[0]
                fill[15] = fill[15] + prio(0, 1)
            if 'prio2' in XF:
                fill[0] = prio(2, 1) + fill[0]
                fill[7] = fill[7] + prio(0, 1)
                fill[15] = fill[15] + prio(2, 1)
                fill[23] = fill[23] + prio(0, 1)
            if 'prio3' in XF:
                fill[0] = prio(2, 1) + fill[0]
                fill[10] = fill[10] + prio(0, 1)
            if 'prio4' in XF:
                fill[0] = prio(1, 0) + fill[0]
                fill[7] = fill[7] + prio(0, 1)
                fill[15] = fill[15] + prio(1, 0)
                fill[23] = fill[23] + prio(0, 1)
            itemsA = qk_items(j + 1, snxt)
            itemsB = pv_items(j)
            nxt = peek_k_reads(j + 2) if not iteration.no_next else []
            pre = emit_seq(a, itemsA + itemsB, pre, fill, nxt)
        else:
            for gl in postc:
                for t in gl: a(t)
            itemsB = pv_items(j)
            a("s_nop 1")
            fl = {}
            if MSUM:
                for s_ in range(4):
                    fl[4 * s_ + 1] = [f"v_mfma_f32_16x16x32_bf16 v[{V_LA}:{V_LA+3}], v[{V_SEL}:{V_SEL+3}], v[{V_P+4*s_}:{V_P+4*s_+3}], v[{V_LA}:{V_LA+3}]"]
            pre = emit_seq(a, itemsB, 0, fl, [])
        return pre
    iteration.no_next = False

    a(f"s_mov_b32 s{S_CNT}, {1 if 'loop1' in XF else 7}")
    if 'stamp' in XF:
        a("s_memtime s[54:55]")
    a.label("Lk2_loop")
    g_at_loop = gctr[0]
    assert g_at_loop % NRING == 0
    p = pre
    for jj in range(4):
        p = iteration(jj, p)
    assert p == pre, (p, pre)
    assert gctr[0] % NRING == 0
    a(f"s_sub_u32 s{S_CNT}, s{S_CNT}, 1")
    a(f"s_cmp_lg_u32 s{S_CNT}, 0")
    a("s_cbranch_scc1 Lk2_loop")
    p = iteration(28, p, vm=4, do_k=False, do_v=True)
    p = iteration(29, p, vm=3, do_k=False, do_v=False)
    iteration.no_next = True
    p = iteration(30, p, vm=0, do_k=False, do_v=False)
    p = iteration(31, p, last=True, vm=0)
    if not MSUM:
        a(f"v_add_f32 v{V_L}, v{V_L}, v{V_L+1}")
    if 'stamp' in XF:
        a("s_memtime s[56:57]")
    if MSUM:
        a(f"""
        v_and_b32 v20, 16, v0
        v_cmp_eq_u32 vcc, 0, v20
        s_nop 15
        v_cndmask_b32 v20, v{V_LA+1}, v{V_LA}, vcc
        """)
    else:
        a(f"""
        v_mov_b32 v20, v{V_L}
        v_mov_b32 v21, v{V_L}
        s_nop 1
        v_permlane32_swap_b32 v20, v21
        s_nop 1
        v_add_f32 v20, v20, v21
        """)
    a(f"""
    v_rcp_f32 v20, v20
    s_lshl_b32 s{S_T2}, s{S_QB}, 3
    s_add_u32 s{S_T2}, s{S_T2}, s{S_W}
    s_lshl_b32 s{S_T2}, s{S_T2}, 18
    s_lshl_b32 s{S_T0}, s{S_HEAD}, 13
    s_add_u32 s{S_T2}, s{S_T2}, s{S_T0}
    s_nop 15
    """)
    for t in range(4):
        for hh in range(2):
            rb = V_S[0] + 8 * (2 * t + hh)
            for x in range(8):
                a(f"v_accvgpr_read_b32 v{rb+x}, a{A_O+16*t+8*hh+x}")
            for x in range(8):
                a(f"v_mul_f32 v{rb+x}, v{rb+x}, v20")
            for x in range(4):
                a(f"v_cvt_pk_bf16_f32 v{rb+x}, v{rb+2*x}, v{rb+2*x+1}")
            k = 2 * t + hh
            if k == 4:
                a(f"s_add_u32 s{S_T2}, s{S_T2}, 4096")
            a(f"buffer_store_dwordx4 v[{rb}:{rb+3}], v{V_LANE16}, s[{S_SRDO}:{S_SRDO+3}], s{S_T2} offen offset:{(k%4)*1024}")
    if 'stamp' in XF:
        a("s_waitcnt vmcnt(0)")
        a("s_memtime s[58:59]")
        a("s_memrealtime s[62:63]")
        a("s_waitcnt lgkmcnt(0)")
        srd(a, 36, 42, 1 << 20, 80 << 20)
        for i in range(16):
            a(f"v_mov_b32 v{24+i}, s{48+i}")
        a(f"""
        s_lshl_b32 s{S_T0}, s2, 3
        s_add_u32 s{S_T0}, s{S_T0}, s{S_W}
        s_lshl_b32 s{S_T0}, s{S_T0}, 6
        v_mov_b32 v20, 0
        s_mov_b64 exec, 1
        buffer_store_dwordx4 v[24:27], v20, s[36:39], s{S_T0} offen
        buffer_store_dwordx4 v[28:31], v20, s[36:39], s{S_T0} offen offset:16
        buffer_store_dwordx4 v[32:35], v20, s[36:39], s{S_T0} offen offset:32
        buffer_store_dwordx4 v[36:39], v20, s[36:39], s{S_T0} offen offset:48
        """)
    a.label("Lk2_end")
    a("s_endpgm")
    for l in rare_blocks: a.raw(l)
    return kernel_desc("attn_kernel", NVGPR + NAGPR, sgpr=80, accum=NVGPR)
```

```python
from genlib import *
from gen_small import *

def gen_prep2(a):
    import os
    kernel_begin(a, "prep_kernel")
    a(f"""
    s_cmp_ge_u32 s2, 256
    s_cbranch_scc1 Lk0_end
    s_cmp_ge_u32 s2, 176
    s_cbranch_scc1 Lk0_end
    s_load_dwordx2 s[4:5], s[0:1], 80
    s_load_dwordx2 s[6:7], s[0:1], 88
    s_load_dwordx2 s[8:9], s[0:1], 112
    s_load_dwordx2 s[10:11], s[0:1], 0
    s_load_dwordx2 s[30:31], s[0:1], 104
    s_cmp_ge_u32 s2, 48
    s_cbranch_scc1 Lk0_h1
    v_and_b32 v1, 7, v0
    v_lshrrev_b32 v2, 3, v0
    v_lshlrev_b32 v3, 5, v2
    s_mov_b32 s24, 98304
    v_mul_lo_u32 v28, v2, s24
    v_lshlrev_b32 v29, 4, v1
    v_add_u32 v28, v28, v29
    s_lshl_b32 s25, s2, 7
    s_waitcnt lgkmcnt(0)
    """)
    srd(a, 12, 4, 1024)
    srd(a, 16, 6, 512 * 3072 * 2)
    srd(a, 20, 8, 3072 * 4, WS_MOD)
    srd(a, 32, 30, 256)
    a("buffer_load_dwordx4 v[4:7], v3, s[12:15], 0 offen")
    a("buffer_load_dwordx4 v[8:11], v3, s[12:15], 0 offen offset:16")
    for kk in range(16):
        a(f"buffer_load_dwordx4 v[{32+4*kk}:{35+4*kk}], v28, s[16:19], s25 offen")
        if kk < 15:
            a("s_add_u32 s25, s25, 6144")
    a("s_waitcnt vmcnt(16)")
    for j in range(8):
        unpack_bf16(a, 12 + 2 * j, 13 + 2 * j, 4 + j)
    a(f"s_mov_b32 s26, {LOG2E:#x}")
    for k in range(16):
        v = 12 + k
        a(f"v_mul_f32 v30, s26, v{v}")
        a(f"v_exp_f32 v30, -v30")
        a("s_nop 0")
        a(f"v_add_f32 v30, 1.0, v30")
        a(f"v_rcp_f32 v30, v30")
        a("s_nop 0")
        a(f"v_mul_f32 v{v}, v{v}, v30")
        round_bf16(a, v, v)
    for j in range(8):
        a(f"v_mov_b32 v{96+j}, 0")
    for kk in range(16):
        a(f"s_waitcnt vmcnt({15-kk})")
        for j in range(4):
            unpack_bf16(a, 30, 31, 32 + 4 * kk + j)
            a(f"v_fmac_f32 v{96+2*j}, v{12+kk}, v30")
            a(f"v_fmac_f32 v{97+2*j}, v{12+kk}, v31")
    a("""
    v_lshlrev_b32 v3, 8, v2
    v_lshlrev_b32 v29, 5, v1
    v_add_u32 v3, v3, v29
    ds_write_b128 v3, v[96:99]
    ds_write_b128 v3, v[100:103] offset:16
    s_waitcnt lgkmcnt(0)
    s_barrier
    v_cmp_gt_u32 vcc, 64, v0
    s_and_saveexec_b64 s[28:29], vcc
    s_cbranch_execz Lk0_end
    v_lshlrev_b32 v3, 2, v0
    """)
    for ks in range(32):
        a(f"ds_read_b32 v{32+ks}, v3 offset:{ks*256}")
    a("s_waitcnt lgkmcnt(0)")
    for ks in range(1, 32):
        a(f"v_add_f32 v32, v32, v{32+ks}")
    round_bf16(a, 32, 32)
    a("""
    s_lshl_b32 s25, s2, 8
    buffer_store_dword v32, v3, s[20:23], s25 offen sc0 sc1
    s_cmp_ge_u32 s2, 16
    s_cbranch_scc1 Lk0_end
    s_waitcnt vmcnt(0)
    v_mov_b32 v4, 1
    v_mov_b32 v5, 0
    s_mov_b64 exec, 1
    buffer_atomic_add v4, v5, s[32:35], 0 offen sc1
    s_branch Lk0_end
    """)
    a.label("Lk0_h1")
    a("""
    v_and_b32 v1, 63, v0
    v_lshrrev_b32 v2, 6, v0
    s_sub_u32 s24, s2, 48
    s_lshl_b32 s24, s24, 2
    v_add_u32 v2, s24, v2
    v_lshlrev_b32 v2, 2, v2
    v_lshlrev_b32 v3, 10, v2
    v_lshlrev_b32 v4, 4, v1
    v_add_u32 v3, v3, v4
    v_lshlrev_b32 v5, 5, v1
    s_waitcnt lgkmcnt(0)
    """)
    srd(a, 12, 10, 2048 * 512 * 2)
    srd(a, 16, 8, 3072 * 4, WS_MOD)
    srd(a, 20, 8, 2048 * 512 * 2, WS_H1F)
    srd(a, 32, 30, 256)
    for r in range(4):
        a(f"buffer_load_dwordx4 v[{8+4*r}:{11+4*r}], v3, s[12:15], 0 offen offset:{r*1024}")
    a("""
    v_lshrrev_b32 v6, 5, v2
    v_lshlrev_b32 v6, 15, v6
    v_lshrrev_b32 v7, 1, v1
    v_lshlrev_b32 v7, 10, v7
    v_add_u32 v6, v6, v7
    v_and_b32 v7, 31, v2
    v_lshlrev_b32 v7, 4, v7
    v_add_u32 v6, v6, v7
    v_and_b32 v7, 1, v1
    v_lshlrev_b32 v7, 9, v7
    v_add_u32 v6, v6, v7
    s_waitcnt vmcnt(0)
    """)
    for r in range(4):
        x0 = 32
        for j in range(4):
            unpack_bf16(a, x0 + 2 * j, x0 + 1 + 2 * j, 8 + 4 * r + j)
        t0, t1, t2, t3 = 24, 25, 26, 27
        a(f"v_add_f32 v{t0}, v{x0}, v{x0+1}")
        for j in range(2, 8):
            a(f"v_add_f32 v{t0}, v{t0}, v{x0+j}")
        wave_allreduce(a, t0, t1, t2)
        a(f"v_mul_f32 v{t0}, 0x3b000000, v{t0}")
        a(f"v_sub_f32 v{t1}, v{x0}, v{t0}")
        a(f"v_mul_f32 v{t3}, v{t1}, v{t1}")
        for j in range(1, 8):
            a(f"v_sub_f32 v{t1}, v{x0+j}, v{t0}")
            a(f"v_fmac_f32 v{t3}, v{t1}, v{t1}")
        wave_allreduce(a, t3, t1, t2)
        a(f"v_mul_f32 v{t3}, 0x3b000000, v{t3}")
        round_bf16(a, t0, t0)
        round_bf16(a, t3, t3)
        a(f"v_add_f32 v{t3}, 0x3727c5ac, v{t3}")
        round_bf16(a, t3, t3)
        a(f"v_sqrt_f32 v{t3}, v{t3}")
        a("s_nop 0")
        round_bf16(a, t3, t3)
        a(f"v_rcp_f32 v{t3}, v{t3}")
        a("s_nop 0")
        for j in range(8):
            o = 64 + 8 * r + j
            a(f"v_sub_f32 v{o}, v{x0+j}, v{t0}")
            round_bf16(a, o, o)
            a(f"v_mul_f32 v{o}, v{o}, v{t3}")
            round_bf16(a, o, o)
    a("v_mov_b32 v28, 0")
    a.label("Lk0_poll")
    a("""
    buffer_load_dword v29, v28, s[32:35], 0 offen sc0 sc1
    s_waitcnt vmcnt(0)
    v_readfirstlane_b32 s24, v29
    s_nop 3
    s_cmp_ge_u32 s24, 16
    s_cbranch_scc1 Lk0_go
    s_sleep 2
    s_branch Lk0_poll
    """)
    a.label("Lk0_go")
    a("""
    buffer_load_dwordx4 v[40:43], v5, s[16:19], 0 offen sc0 sc1
    buffer_load_dwordx4 v[44:47], v5, s[16:19], 0 offen offset:16 sc0 sc1
    buffer_load_dwordx4 v[48:51], v5, s[16:19], 0 offen offset:2048 sc0 sc1
    buffer_load_dwordx4 v[52:55], v5, s[16:19], 0 offen offset:2064 sc0 sc1
    s_waitcnt vmcnt(0)
    """)
    for j in range(8):
        a(f"v_add_f32 v{48+j}, 1.0, v{48+j}")
        round_bf16(a, 48 + j, 48 + j)
    for r in range(4):
        for j in range(8):
            o = 64 + 8 * r + j
            a(f"v_mul_f32 v{o}, v{o}, v{48+j}")
            round_bf16(a, o, o)
            a(f"v_add_f32 v{o}, v{o}, v{40+j}")
        for j in range(4):
            a(f"v_cvt_pk_bf16_f32 v{8+4*r+j}, v{64+8*r+2*j}, v{65+8*r+2*j}")
        a(f"buffer_store_dwordx4 v[{8+4*r}:{11+4*r}], v6, s[20:23], 0 offen offset:{16*r}")
    a("s_branch Lk0_end")
    a.label("Lk0_pf")
    a("""
    s_load_dwordx2 s[4:5], s[0:1], 32     ; wo
    s_load_dwordx2 s[6:7], s[0:1], 56     ; gate
    s_load_dwordx2 s[8:9], s[0:1], 64     ; up
    s_load_dwordx2 s[10:11], s[0:1], 72   ; down
    s_load_dwordx2 s[28:29], s[0:1], 24   ; wq
    v_lshrrev_b32 v1, 6, v0
    s_nop 0
    v_readfirstlane_b32 s24, v1
    v_and_b32 v1, 63, v0
    v_lshlrev_b32 v1, 7, v1
    s_sub_u32 s25, s2, 176
    s_lshl_b32 s25, s25, 2
    s_add_u32 s24, s24, s25               ; gw 0..319
    s_waitcnt lgkmcnt(0)
    """)
    srd(a, 12, 28, 4194304)
    srd(a, 16, 4, 4194304)
    srd(a, 20, 6, 1835008)
    srd(a, 32, 8, 1835008)
    srd(a, 36, 10, 1835008)
    a("s_lshl_b32 s25, s24, 14")
    a("s_lshl_b32 s26, s24, 13")
    a("buffer_load_dword v2, v1, s[12:15], s25 offen")
    a("s_add_u32 s25, s25, 8192")
    a("buffer_load_dword v3, v1, s[12:15], s25 offen")
    a.label("Lk0_end")
    a("s_endpgm")
    return kernel_desc("prep_kernel", 104, sgpr=64)
```

```python
from genlib import *
from gen_small import *
import struct, os
XF = set(os.environ.get('XF', '').split(','))

def f32hex(x):
    return struct.unpack("<I", struct.pack("<f", x))[0]

SCALE_C = (128 ** -0.5) * 1.4426950408889634
THR = 5.5 if 'novalu' not in XF else 1e30

V_KA = 1
V_VA = 9
V_KDMA = 13
V_VDMA = 14
V_MTHR = 15
V_NMC = 16
V_F = 17
V_L = 18
V_M = 143
V_MX = 141
USE_PK = False
V_T = 20
V_RING = 24
NRING = 8
V_P = 56
V_S = [72, 104]
V_PA = 136
V_WDMA = 140
V_HOFF = 141
V_LANE16 = 142
V_HX = 144
A_Q = 0
A_O = 32
NVGPR = 160
NAGPR = 96
V_SEL = 144
V_LA = 148
MSUM = 'nomsum' not in XF

KSLOT = [i * 16384 for i in range(4)]
VSLOT = [65536 + i * 16384 for i in range(4)]

S_HEAD = 3; S_QB = 4; S_W = 5; S_W1K = 6
S_SRDK = 8; S_SRDV = 12; S_SRDW = 16; S_SRDH = 20; S_SRDO = 24
S_KOFF = 28; S_VOFF = 29; S_T0 = 30; S_T1 = 31; S_CNT = 32; S_C = 33; S_T2 = 34; S_SCALE = 46; S_L2E = 44; S_FLAG = 35

def ring(g):
    b = V_RING + 4 * (g % NRING)
    return b

def dma(a, srdreg, voff, soff_sgpr, extra, ldsaddr):
    a(f"s_add_u32 m0, s{S_W1K}, {ldsaddr}")
    if extra:
        a(f"s_add_u32 s{S_T0}, s{soff_sgpr}, {extra}")
        so = S_T0
    else:
        a("s_nop 0")
        so = soff_sgpr
    a(f"buffer_load_dwordx4 v{voff}, s[{srdreg}:{srdreg+3}], s{so} offen lds")

def dma_k(a, slot):
    dma(a, S_SRDK, V_KDMA, S_KOFF, 0, KSLOT[slot])
    dma(a, S_SRDK, V_KDMA, S_KOFF, 8192, KSLOT[slot] + 8192)
    a(f"s_add_u32 s{S_KOFF}, s{S_KOFF}, 16384")

def dma_v(a, slot):
    dma(a, S_SRDV, V_VDMA, S_VOFF, 0, VSLOT[slot])
    dma(a, S_SRDV, V_VDMA, S_VOFF, 8192, VSLOT[slot] + 8192)
    a(f"s_add_u32 s{S_VOFF}, s{S_VOFF}, 16384")

class Stream:
    pass

def kread(g, slot, kb, ks):
    if 'nolds' in XF: return []
    if 'halflds' in XF and (g & 1): return []
    b = ring(g)
    return [f"ds_read_b128 v[{b}:{b+3}], v{V_KA+ks} offset:{KSLOT[slot] + kb*8192}"]

def vread(g, slot, s, t):
    if 'nolds' in XF: return []
    if 'halflds' in XF and (g & 1): return []
    b = ring(g)
    off = VSLOT[slot] - 65536 + s * 4096
    return [f"ds_read_b64_tr_b16 v[{b}:{b+1}], v{V_VA+t} offset:{off}",
            f"ds_read_b64_tr_b16 v[{b+2}:{b+3}], v{V_VA+t} offset:{off+2048}"]

def wread(g, ldsbase, s, t):
    b = ring(g)
    off = ldsbase + s * 4096
    ar = V_PA + t
    if off >= 65536:
        off -= 65536; ar = 15 + t
    return [f"ds_read_b64_tr_b16 v[{b}:{b+1}], v{ar} offset:{off}",
            f"ds_read_b64_tr_b16 v[{b+2}:{b+3}], v{ar} offset:{off+1024}"]

def hfrag(ks):
    if ks < 16: return f"a[{A_O+4*ks}:{A_O+4*ks+3}]"
    if ks < 24: return f"a[{A_Q+4*(ks-16)}:{A_Q+4*(ks-16)+3}]"
    if ks < 28: return f"v[{V_P+4*(ks-24)}:{V_P+4*(ks-24)+3}]"
    return f"v[{V_HX+4*(ks-28)}:{V_HX+4*(ks-28)+3}]"

def emit_seq(a, items, pre_issued, fillers, tail_reads):
    D = NRING
    allreads = [r for (_, r) in items] + tail_reads
    n = len(items)
    issued = pre_issued
    while issued < min(D, len(allreads)):
        for r in allreads[issued]: a(r)
        issued += 1
    for i in range(n):
        cnt = sum(len(allreads[k]) for k in range(i + 1, issued))
        if 'wait2' in XF and n % 2 == 0:
            if i % 2 == 0:
                cnt = sum(len(allreads[k]) for k in range(i + 2, issued))
                a(f"s_waitcnt lgkmcnt({cnt})")
        elif 'nowait' not in XF: a(f"s_waitcnt lgkmcnt({cnt})")
        if 'm16' in XF and 'v_mfma_f32_32x32x16' in items[i][0]:
            import re
            m = re.match(r"v_mfma_f32_32x32x16_bf16 ([av])\[(\d+):\d+\], (\S+), (\S+), (.*)", items[i][0])
            ty, d0, A, B, C = m.group(1), int(m.group(2)), m.group(3), m.group(4), m.group(5)
            for h in range(2):
                dd = d0 + 4 * h
                cc = "0" if C == "0" else f"{ty}[{dd}:{dd+3}]"
                a(f"v_mfma_f32_16x16x32_bf16 {ty}[{dd}:{dd+3}], {A} {B} {cc}")
        else:
            a(items[i][0])
        if issued < len(allreads) and issued == i + D:
            for r in allreads[issued]: a(r)
            issued += 1
        for f in fillers.get(i, []):
            a(f)
    return issued - n

def gen_k2(a):
    kernel_begin(a, "attn_kernel")
    a(f"""
    s_cmp_ge_u32 s2, 256
    s_cbranch_scc1 Lk2_end
    s_load_dwordx2 s[36:37], s[0:1], 8      ; K
    s_load_dwordx2 s[38:39], s[0:1], 16     ; V
    s_load_dwordx2 s[40:41], s[0:1], 24     ; wq
    s_load_dwordx2 s[42:43], s[0:1], 112    ; ws
    s_load_dwordx2 s[64:65], s[0:1], 32     ; wo
    s_load_dwordx4 s[68:71], s[0:1], 56
    s_load_dwordx2 s[66:67], s[0:1], 72     ; down
    s_and_b32 s{S_HEAD}, s2, 7
    s_lshr_b32 s{S_T0}, s2, 6
    s_lshl_b32 s{S_T0}, s{S_T0}, 3
    s_or_b32 s{S_HEAD}, s{S_HEAD}, s{S_T0}
    s_lshr_b32 s{S_QB}, s2, 3
    s_and_b32 s{S_QB}, s{S_QB}, 7
    v_lshrrev_b32 v1, 6, v0
    s_nop 0
    v_readfirstlane_b32 s{S_W}, v1
    v_and_b32 v0, 63, v0
    s_lshl_b32 s{S_W1K}, s{S_W}, 10
    s_mov_b32 s{S_C}, {f32hex(SCALE_C):#x}
    s_mov_b32 s{S_SCALE}, {f32hex(128 ** -0.5):#x}
    s_mov_b32 s{S_L2E}, {f32hex(1.4426950408889634):#x}
    """)
    if 'stamp' in XF:
        a("s_memtime s[48:49]")
    if 'stamp' in XF: a("s_memrealtime s[60:61]")
    a(f"""
    v_lshlrev_b32 v{V_LANE16}, 4, v0
    v_lshrrev_b32 v20, 4, v0            ; i>>4 (0..3)
    v_and_b32 v21, 15, v0               ; i&15
    s_lshl_b32 s{S_T0}, s{S_W}, 2
    v_add_u32 v22, s{S_T0}, v20
    v_and_b32 v22, 15, v22
    v_xor_b32 v22, v22, v21
    v_lshlrev_b32 v22, 4, v22
    v_lshlrev_b32 v23, 8, v20
    v_add_u32 v22, v22, v23
    v_add_u32 v{V_KDMA}, s{S_W1K}, v22
    v_lshlrev_b32 v22, 2, v20
    v_xor_b32 v22, v22, v21
    v_lshlrev_b32 v22, 4, v22
    v_add_u32 v{V_VDMA}, v22, v23
    v_add_u32 v{V_VDMA}, s{S_W1K}, v{V_VDMA}
    v_lshlrev_b32 v23, 13, v20
    v_add_u32 v{V_WDMA}, v22, v23
    s_lshl_b32 s{S_T0}, s{S_W}, 15
    v_add_u32 v{V_WDMA}, s{S_T0}, v{V_WDMA}
    v_and_b32 v20, 31, v0
    v_lshlrev_b32 v20, 8, v20
    v_lshrrev_b32 v22, 5, v0
    v_xor_b32 v23, v22, v21
    v_lshlrev_b32 v23, 4, v23
    v_add_u32 v{V_KA}, v20, v23
    """)
    for ks in range(1, 8):
        a(f"v_xor_b32 v{V_KA+ks}, {ks*32}, v{V_KA}")
    a(f"""
    v_lshrrev_b32 v20, 2, v21           ; r
    v_lshrrev_b32 v23, 4, v0
    v_and_b32 v23, 1, v23
    v_lshlrev_b32 v23, 5, v23           ; 32g
    v_and_b32 v21, 3, v0
    v_lshlrev_b32 v21, 3, v21           ; 8c
    v_add_u32 v21, v21, v23             ; 32g+8c
    v_lshlrev_b32 v23, 8, v20           ; r*256
    v_add_u32 v21, v21, v23             ; r*256+32g+8c
    v_lshlrev_b32 v23, 10, v22          ; u*1024
    """)
    for t in range(4):
        a(f"v_xor_b32 v{V_VA+t}, {t}, v20")
        a(f"v_lshlrev_b32 v{V_VA+t}, 6, v{V_VA+t}")
        a(f"v_add_u32 v{V_VA+t}, v{V_VA+t}, v21")
        a(f"v_add_u32 v{V_VA+t}, v{V_VA+t}, v23")
        a(f"v_add_u32 v{V_PA+t}, v{V_VA+t}, v23")
        a(f"v_add_u32 v{V_VA+t}, 0x10000, v{V_VA+t}")
        a(f"v_add_u32 v{15+t}, 0x10000, v{V_PA+t}")
    a("s_waitcnt lgkmcnt(0)")
    a(f"""
    s_lshl_b32 s{S_T0}, s{S_HEAD}, 19
    s_add_u32 s{S_SRDK}, s36, s{S_T0}
    s_addc_u32 s{S_SRDK+1}, s37, 0
    s_mov_b32 s{S_SRDK+2}, 0x80000
    s_mov_b32 s{S_SRDK+3}, 0x00020000
    s_add_u32 s{S_SRDV}, s38, s{S_T0}
    s_addc_u32 s{S_SRDV+1}, s39, 0
    s_mov_b32 s{S_SRDV+2}, 0x80000
    s_mov_b32 s{S_SRDV+3}, 0x00020000
    s_lshl_b32 s{S_T0}, s{S_HEAD}, 8
    s_add_u32 s{S_SRDW}, s40, s{S_T0}
    s_addc_u32 s{S_SRDW+1}, s41, 0
    s_sub_u32 s{S_SRDW+2}, 0x400000, s{S_T0}
    s_mov_b32 s{S_SRDW+3}, 0x00020000
    """)
    a(f"""
    s_lshl_b32 s76, s2, 3
    s_add_u32 s76, s76, s{S_W}            ; gw
    s_mov_b32 s72, s64
    s_mov_b32 s73, s65
    s_mov_b32 s74, 0x400000
    s_mov_b32 s75, 0x00020000
    s_lshl_b32 s77, s76, 13
    s_cmp_ge_u32 s76, 512
    s_cselect_b32 s72, s68, s72
    s_cselect_b32 s73, s69, s73
    s_cselect_b32 s74, 0x1c0000, s74
    s_cselect_b32 s78, 0x400000, 0
    s_cmp_ge_u32 s76, 736
    s_cselect_b32 s72, s70, s72
    s_cselect_b32 s73, s71, s73
    s_cselect_b32 s78, 0x5c0000, s78
    s_cmp_ge_u32 s76, 960
    s_cselect_b32 s72, s66, s72
    s_cselect_b32 s73, s67, s73
    s_cselect_b32 s78, 0x780000, s78
    s_sub_u32 s77, s77, s78
    """)
    srd(a, S_SRDH, 42, 2048 * 512 * 2, WS_H1F)
    srd(a, S_SRDO, 42, 2048 * 4096 * 2, WS_OF)
    wslot = [KSLOT[0], KSLOT[1], KSLOT[2], VSLOT[0], VSLOT[1], KSLOT[3], VSLOT[2], VSLOT[3]]
    a(f"s_mov_b32 s{S_T1}, 0")
    if 'wqlin' in XF:
        a(f"s_lshl_b32 s{S_T1}, s{S_HEAD}, 16")
    def dma_w(c):
        if 'wqlin' in XF:
            dma(a, S_SRDW, V_VDMA, S_T1, 0, wslot[c])
            dma(a, S_SRDW, V_VDMA, S_T1, 8192, wslot[c] + 8192)
            a(f"s_add_u32 s{S_T1}, s{S_T1}, 16384")
            return
        dma(a, S_SRDW, V_WDMA, S_T1, 0, wslot[c])
        dma(a, S_SRDW, V_WDMA, S_T1, 262144, wslot[c] + 8192)
        a(f"s_add_u32 s{S_T1}, s{S_T1}, 524288")
    a(f"""
    s_lshl_b32 s{S_T2}, s{S_QB}, 3
    s_add_u32 s{S_T2}, s{S_T2}, s{S_W}
    s_lshl_b32 s{S_T2}, s{S_T2}, 15
    """)
    def chunk_loads(c):
        groups = []
        a2 = Asm()
        sav = a.lines; a.lines = a2.lines
        dma_w(c)
        a.lines = sav
        L = [l.strip() for l in a2.lines]
        groups.append(L[0:3]); groups.append(L[3:])
        for ks in range(4 * c, 4 * c + 4):
            g_ = [f"buffer_load_dwordx4 {hfrag(ks)}, v{V_LANE16}, s[{S_SRDH}:{S_SRDH+3}], s{S_T2} offen offset:{(ks%4)*1024}"]
            if ks % 4 == 3: g_.append(f"s_add_u32 s{S_T2}, s{S_T2}, 4096")
            groups.append(g_)
        return groups
    for c in range(3):
        for g_ in chunk_loads(c):
            for t in g_: a(t)
    a(f"s_mov_b32 s{S_KOFF}, 0")
    a(f"s_mov_b32 s{S_VOFF}, 0")
    if 'stamp' in XF:
        a("s_memtime s[50:51]")
    kvq = [('k', 0), ('k', 1), ('k', 2), ('v', 0), ('v', 1), ('k', 3), ('v', 2)]
    a("s_waitcnt vmcnt(6)")
    a("s_barrier")
    g = 0
    items = []
    fill = {}
    for c in range(8):
        for s_ in range(4):
            for t in range(4):
                d = V_S[0] + 16 * t
                first = (c == 0 and s_ == 0)
                csrc = "0" if first else f"v[{d}:{d+15}]"
                b = ring(g)
                items.append((f"v_mfma_f32_32x32x16_bf16 v[{d}:{d+15}], v[{b}:{b+3}], {hfrag(4*c+s_)}, {csrc}",
                              wread(g, wslot[c], s_, t)))
                g += 1
        nops = 0
        pos = 16 * c
        if c >= 1:
            a2 = Asm()
            kind, sl = kvq[c - 1]
            (dma_k if kind == 'k' else dma_v)(a2, sl)
            L = [l.strip() for l in a2.lines]
            fill[pos] = L[0:3]; fill[pos + 1] = L[3:]
            nops += 2
        if c + 3 < 8:
            for k, g_ in enumerate(chunk_loads(c + 3)):
                fill[pos + 2 + 2 * k] = g_
            nops += 6
        if c < 7:
            fill[pos + 15] = [f"s_waitcnt vmcnt({nops})", "s_barrier"]
    emit_seq(a, items, 0, fill, [])
    if 'stamp' in XF:
        a("s_memtime s[52:53]")
    a("s_nop 15")
    for t in range(4):
        for hh in range(2):
            base = V_S[0] + 16 * t + 8 * hh
            a(f"v_cvt_pk_bf16_f32 v20, v{base}, v{base+1}")
            a(f"v_cvt_pk_bf16_f32 v21, v{base+2}, v{base+3}")
            a(f"v_cvt_pk_bf16_f32 v22, v{base+4}, v{base+5}")
            a(f"v_cvt_pk_bf16_f32 v23, v{base+6}, v{base+7}")
            a("s_nop 1")
            a("v_permlane32_swap_b32 v20, v22")
            a("v_permlane32_swap_b32 v21, v23")
            a("s_nop 1")
            ks = 2 * t + hh
            for x in range(4):
                a(f"v_accvgpr_write_b32 a{A_Q+4*ks+x}, v{20+x}")
    for i in range(64):
        a(f"v_accvgpr_write_b32 a{A_O+i}, 0")
    a(f"""
    v_mov_b32 v{V_M}, 0xff800000
    v_mov_b32 v{V_MTHR}, 0xff800000
    v_mov_b32 v{V_L}, 0
    v_mov_b32 v{V_L+1}, 0
    v_mov_b32 v{V_NMC}, 0
    v_lshrrev_b32 v20, 4, v0
    v_xor_b32 v20, v20, v0
    v_and_b32 v20, 1, v20
    v_cmp_eq_u32 vcc, 0, v20
    v_mov_b32 v21, 0x3f803f80
    s_nop 1
    v_cndmask_b32 v{V_SEL}, 0, v21, vcc
    v_cndmask_b32 v{V_SEL+1}, 0, v21, vcc
    v_cndmask_b32 v{V_SEL+2}, 0, v21, vcc
    v_cndmask_b32 v{V_SEL+3}, 0, v21, vcc
    v_mov_b32 v{V_LA}, 0
    v_mov_b32 v{V_LA+1}, 0
    v_mov_b32 v{V_LA+2}, 0
    v_mov_b32 v{V_LA+3}, 0
    s_waitcnt vmcnt(10)
    s_barrier
    """)

    gctr = [0]
    def qk_items(tile, sdst):
        items = []
        order = [(kb, ks) for kb in range(2) for ks in range(8)]
        if 'qkorder' in XF: order = [(kb, ks) for ks in range(8) for kb in range(2)]
        for (kb, ks) in order:
            if True:
                d = V_S[sdst] + 16 * kb
                csrc = "0" if ks == 0 else f"v[{d}:{d+15}]"
                gg = gctr[0]; gctr[0] += 1
                b = ring(gg)
                items.append((f"v_mfma_f32_32x32x16_bf16 v[{d}:{d+15}], v[{b}:{b+3}], a[{A_Q+4*ks}:{A_Q+4*ks+3}], {csrc}",
                              kread(gg, tile % 4, kb, ks)))
        return items
    def pv_items(tile):
        items = []
        for s in range(4):
            for t in range(4):
                d = A_O + 16 * t
                gg = gctr[0]; gctr[0] += 1
                b = ring(gg)
                items.append((f"v_mfma_f32_32x32x16_bf16 a[{d}:{d+15}], v[{b}:{b+3}], v[{V_P+4*s}:{V_P+4*s+3}], a[{d}:{d+15}]",
                              vread(gg, tile % 4, s, t)))
        return items
    def peek_k_reads(tile):
        save = gctr[0]
        it = qk_items(tile, 0)
        gctr[0] = save
        return [r for (_, r) in it[:NRING]]

    def prep_ops(sreg, pairs):
        b = V_S[sreg]
        ops = []
        n = len(pairs)
        for k in range(n + 3):
            if k < n:
                i = pairs[k]
                ops.append((f"v_cvt_pk_bf16_f32 v{b+2*i}, 0, v{b+2*i}", 1))
                ops.append((f"v_cvt_pk_bf16_f32 v{b+2*i+1}, 0, v{b+2*i+1}", 1))
            if 0 <= k - 1 < n:
                i = pairs[k - 1]
                if USE_PK:
                    ops.append((f"v_pk_mul_f32 v[{b+2*i}:{b+2*i+1}], v[{b+2*i}:{b+2*i+1}], s[{S_SCALE}:{S_SCALE+1}] op_sel_hi:[1,0]", 1))
                else:
                    ops.append((f"v_mul_f32 v{b+2*i}, s{S_SCALE}, v{b+2*i}", 1))
                    ops.append((f"v_mul_f32 v{b+2*i+1}, s{S_SCALE}, v{b+2*i+1}", 1))
            if 0 <= k - 2 < n:
                i = pairs[k - 2]
                ops.append((f"v_cvt_pk_bf16_f32 v{b+2*i}, 0, v{b+2*i}", 1))
                ops.append((f"v_cvt_pk_bf16_f32 v{b+2*i+1}, 0, v{b+2*i+1}", 1))
            if 0 <= k - 3 < n:
                i = pairs[k - 3]
                if i == 0:
                    ops.append((f"v_max_f32 v{V_MX}, v{b}, v{b+1}", 1))
                else:
                    ops.append((f"v_max3_f32 v{V_MX}, v{V_MX}, v{b+2*i}, v{b+2*i+1}", 1))
        return ops

    def post_ops(sreg):
        b = V_S[sreg]
        ops = []
        for k in range(16 + 2):
            if k < 16:
                i = k
                if USE_PK:
                    ops.append((f"v_pk_fma_f32 v[{b+2*i}:{b+2*i+1}], v[{b+2*i}:{b+2*i+1}], s[{S_L2E}:{S_L2E+1}], v[{V_NMC}:{V_NMC+1}] op_sel_hi:[1,0,0]", 1))
                else:
                    ops.append((f"v_fma_f32 v{b+2*i}, v{b+2*i}, s{S_L2E}, v{V_NMC}", 1))
                    ops.append((f"v_fma_f32 v{b+2*i+1}, v{b+2*i+1}, s{S_L2E}, v{V_NMC}", 1))
            if 0 <= k - 1 < 16:
                i = k - 1
                ops.append((f"v_exp_f32 v{b+2*i}, v{b+2*i}", 2))
                ops.append((f"v_exp_f32 v{b+2*i+1}, v{b+2*i+1}", 2))
            if 0 <= k - 2 < 16:
                i = k - 2
                if USE_PK:
                    ops.append((f"v_pk_add_f32 v[{V_L}:{V_L+1}], v[{V_L}:{V_L+1}], v[{b+2*i}:{b+2*i+1}]", 1))
                elif not MSUM:
                    ops.append((f"v_add_f32 v{V_L}, v{V_L}, v{b+2*i}", 1))
                    ops.append((f"v_add_f32 v{V_L+1}, v{V_L+1}, v{b+2*i+1}", 1))
                ops.append((f"v_cvt_pk_bf16_f32 v{V_P+i}, v{b+2*i}, v{b+2*i+1}", 1))
        return ops

    def spread(ops, nslots):
        if 'novalu' in XF: ops = [(t, w) for (t, w) in ops if 'v_max' in t]
        if 'noexp' in XF: ops = [(t.replace('v_exp_f32', 'v_mov_b32'), w) for (t, w) in ops]
        if 'nocvt' in XF: ops = [(t, w) for (t, w) in ops if not ('v_cvt_pk' in t and ', 0, ' in t)]
        tot = sum(w for _, w in ops)
        out = [[] for _ in range(nslots)]
        acc = 0
        for t, w in ops:
            k = min(nslots - 1, int((acc + w / 2) * nslots / tot))
            out[k].append(t)
            acc += w
        return out

    NPOST_B = 6
    PREP0 = 10

    def rare1(lbl_rare, lbl_back):
        r = [f"{lbl_rare}:"]
        body = f"""
        v_max_f32 v{V_MX}, v{V_MX}, v{V_M}
        v_mov_b32 v20, v{V_MX}
        v_mov_b32 v21, v{V_MX}
        s_nop 1
        v_permlane32_swap_b32 v20, v21
        s_nop 1
        v_max_f32 v{V_MX}, v20, v21
        v_sub_f32 v20, v{V_M}, v{V_MX}
        v_mul_f32 v20, s{S_L2E}, v20
        v_exp_f32 v{V_F}, v20
        v_mov_b32 v{V_M}, v{V_MX}
        v_mul_f32 v{V_NMC}, s{S_L2E}, v{V_MX}
        v_sub_f32 v{V_NMC}, 0, v{V_NMC}
        v_add_f32 v{V_MTHR}, {f32hex(THR):#x}, v{V_MX}
        v_mul_f32 v{V_L}, v{V_L}, v{V_F}
        v_mul_f32 v{V_L+1}, v{V_L+1}, v{V_F}
        s_mov_b32 s{S_FLAG}, 1
        s_branch {lbl_back}
        """
        r += ["    " + l.strip() for l in body.strip().split("\n")]
        return r
    def rare2(lbl_rare, lbl_back):
        r = [f"{lbl_rare}:", "    s_nop 15"]
        for i in range(64):
            r.append(f"    v_accvgpr_read_b32 v21, a{A_O+i}")
            r.append(f"    v_mul_f32 v21, v21, v{V_F}")
            r.append(f"    v_accvgpr_write_b32 a{A_O+i}, v21")
        if MSUM:
            r += [f"    v_mov_b32 v20, v{V_F}", f"    v_mov_b32 v21, v{V_F}", "    s_nop 1",
                  "    v_permlane16_swap_b32 v20, v21", "    s_nop 1",
                  f"    v_mul_f32 v{V_LA}, v{V_LA}, v20", f"    v_mul_f32 v{V_LA+1}, v{V_LA+1}, v21",
                  f"    v_mul_f32 v{V_LA+2}, v{V_LA+2}, v20", f"    v_mul_f32 v{V_LA+3}, v{V_LA+3}, v21"]
        r.append(f"    s_mov_b32 s{S_FLAG}, 0")
        r.append("    s_nop 1")
        r.append(f"    s_branch {lbl_back}")
        return r

    rare_blocks = []
    def check1():
        lr = a.newlabel("rareA"); lb = a.newlabel("backA")
        rare_blocks.extend(rare1(lr, lb))
        return [f"v_cmp_gt_f32 vcc, v{V_MX}, v{V_MTHR}", f"s_cbranch_vccnz {lr}", f"{lb}:"]
    def check2():
        lr = a.newlabel("rareB"); lb = a.newlabel("backB")
        rare_blocks.extend(rare2(lr, lb))
        return [f"s_cmp_lg_u32 s{S_FLAG}, 0", f"s_cbranch_scc1 {lr}", f"{lb}:"]

    a(f"s_mov_b32 s{S_FLAG}, 0")
    items = qk_items(0, 0)
    pre = emit_seq(a, items, 0, {}, peek_k_reads(1))
    a("s_nop 15")
    for t, w in prep_ops(0, list(range(16))): a(t)
    for t in check1(): a(t)
    a(f"s_mov_b32 s{S_FLAG}, 0")
    for gl in spread(post_ops(0), 16)[:NPOST_B]:
        for t in gl: a(t)

    def iteration(j, pre, last=False, vm=4, do_k=True, do_v=True):
        scur = j & 1; snxt = 1 - scur
        a(f"s_waitcnt vmcnt({vm})")
        if 'nobar' not in XF: a("s_barrier")
        if 'nodma' in XF: do_k = do_v = False
        postc = spread(post_ops(scur), 16)[NPOST_B:]
        if not last:
            fill = {i: [] for i in range(32)}
            for k, gl in enumerate(postc): fill[k] += gl
            nprep = 32 - NPOST_B - PREP0
            p0 = spread(prep_ops(snxt, list(range(8))), nprep // 2)
            p1 = spread(prep_ops(snxt, list(range(8, 16))), nprep - nprep // 2)
            for k, gl in enumerate(p0 + p1): fill[PREP0 + k] += gl
            fill[32 - NPOST_B - 1] += check1()
            for k, gl in enumerate(spread(post_ops(snxt), 16)[:NPOST_B]): fill[32 - NPOST_B + k] += gl
            if MSUM:
                for s_ in range(4):
                    fill[16 + 4 * s_ + 1] = [f"v_mfma_f32_16x16x32_bf16 v[{V_LA}:{V_LA+3}], v[{V_SEL}:{V_SEL+3}], v[{V_P+4*s_}:{V_P+4*s_+3}], v[{V_LA}:{V_LA+3}]"] + fill[16 + 4 * s_ + 1]
            fill[31] += check2()
            a2 = Asm()
            if do_k: dma_k(a2, j % 4)
            fill[1] = fill[1] + [l.strip() for l in a2.lines]
            a2 = Asm()
            if do_v: dma_v(a2, (j + 3) % 4)
            fill[6] = fill[6] + [l.strip() for l in a2.lines]
            if j == 28:
                fill[9] = fill[9] + [f"v_lshlrev_b32 v153, 3, v{V_LANE16}", "buffer_load_dword v152, v153, s[72:75], s77 offen"]
            def prio(lo, hi):
                l1 = a.newlabel("pr"); l2 = a.newlabel("pr")
                return [f"s_cmp_lt_u32 s{S_W}, 4", f"s_cbranch_scc0 {l1}", f"s_setprio {lo}", f"s_branch {l2}", f"{l1}:", f"s_setprio {hi}", f"{l2}:"]
            if 'noprio' not in XF:
                PS = int(os.environ.get('PS', '15'))
                fill[0] = prio(2, 1) + fill[0]
                fill[PS] = fill[PS] + prio(0, 1)
            if 'prio2' in XF:
                fill[0] = prio(2, 1) + fill[0]
                fill[7] = fill[7] + prio(0, 1)
                fill[15] = fill[15] + prio(2, 1)
                fill[23] = fill[23] + prio(0, 1)
            if 'prio3' in XF:
                fill[0] = prio(2, 1) + fill[0]
                fill[10] = fill[10] + prio(0, 1)
            if 'prio4' in XF:
                fill[0] = prio(1, 0) + fill[0]
                fill[7] = fill[7] + prio(0, 1)
                fill[15] = fill[15] + prio(1, 0)
                fill[23] = fill[23] + prio(0, 1)
            itemsA = qk_items(j + 1, snxt)
            itemsB = pv_items(j)
            nxt = peek_k_reads(j + 2) if not iteration.no_next else []
            pre = emit_seq(a, itemsA + itemsB, pre, fill, nxt)
        else:
            for gl in postc:
                for t in gl: a(t)
            itemsB = pv_items(j)
            a("s_nop 1")
            fl = {}
            if MSUM:
                for s_ in range(4):
                    fl[4 * s_ + 1] = [f"v_mfma_f32_16x16x32_bf16 v[{V_LA}:{V_LA+3}], v[{V_SEL}:{V_SEL+3}], v[{V_P+4*s_}:{V_P+4*s_+3}], v[{V_LA}:{V_LA+3}]"]
            pre = emit_seq(a, itemsB, 0, fl, [])
        return pre
    iteration.no_next = False

    a(f"s_mov_b32 s{S_CNT}, {1 if 'loop1' in XF else 7}")
    if 'stamp' in XF:
        a("s_memtime s[54:55]")
    a.label("Lk2_loop")
    g_at_loop = gctr[0]
    assert g_at_loop % NRING == 0
    p = pre
    for jj in range(4):
        p = iteration(jj, p)
    assert p == pre, (p, pre)
    assert gctr[0] % NRING == 0
    a(f"s_sub_u32 s{S_CNT}, s{S_CNT}, 1")
    a(f"s_cmp_lg_u32 s{S_CNT}, 0")
    a("s_cbranch_scc1 Lk2_loop")
    p = iteration(28, p, vm=4, do_k=False, do_v=True)
    p = iteration(29, p, vm=3, do_k=False, do_v=False)
    iteration.no_next = True
    p = iteration(30, p, vm=0, do_k=False, do_v=False)
    p = iteration(31, p, last=True, vm=0)
    if not MSUM:
        a(f"v_add_f32 v{V_L}, v{V_L}, v{V_L+1}")
    if 'stamp' in XF:
        a("s_memtime s[56:57]")
    if MSUM:
        a(f"""
        v_and_b32 v20, 16, v0
        v_cmp_eq_u32 vcc, 0, v20
        s_nop 15
        v_cndmask_b32 v20, v{V_LA+1}, v{V_LA}, vcc
        """)
    else:
        a(f"""
        v_mov_b32 v20, v{V_L}
        v_mov_b32 v21, v{V_L}
        s_nop 1
        v_permlane32_swap_b32 v20, v21
        s_nop 1
        v_add_f32 v20, v20, v21
        """)
    a(f"""
    v_rcp_f32 v20, v20
    s_lshl_b32 s{S_T2}, s{S_QB}, 3
    s_add_u32 s{S_T2}, s{S_T2}, s{S_W}
    s_lshl_b32 s{S_T2}, s{S_T2}, 18
    s_lshl_b32 s{S_T0}, s{S_HEAD}, 13
    s_add_u32 s{S_T2}, s{S_T2}, s{S_T0}
    s_nop 15
    """)
    for t in range(4):
        for hh in range(2):
            rb = V_S[0] + 8 * (2 * t + hh)
            for x in range(8):
                a(f"v_accvgpr_read_b32 v{rb+x}, a{A_O+16*t+8*hh+x}")
            for x in range(8):
                a(f"v_mul_f32 v{rb+x}, v{rb+x}, v20")
            for x in range(4):
                a(f"v_cvt_pk_bf16_f32 v{rb+x}, v{rb+2*x}, v{rb+2*x+1}")
            k = 2 * t + hh
            if k == 4:
                a(f"s_add_u32 s{S_T2}, s{S_T2}, 4096")
            a(f"buffer_store_dwordx4 v[{rb}:{rb+3}], v{V_LANE16}, s[{S_SRDO}:{S_SRDO+3}], s{S_T2} offen offset:{(k%4)*1024}" + " sc1")
    if 'stamp' in XF:
        a("s_waitcnt vmcnt(0)")
        a("s_memtime s[58:59]")
        a("s_memrealtime s[62:63]")
        a("s_waitcnt lgkmcnt(0)")
        srd(a, 36, 42, 1 << 20, 80 << 20)
        for i in range(16):
            a(f"v_mov_b32 v{24+i}, s{48+i}")
        a(f"""
        s_lshl_b32 s{S_T0}, s2, 3
        s_add_u32 s{S_T0}, s{S_T0}, s{S_W}
        s_lshl_b32 s{S_T0}, s{S_T0}, 6
        v_mov_b32 v20, 0
        s_mov_b64 exec, 1
        buffer_store_dwordx4 v[24:27], v20, s[36:39], s{S_T0} offen
        buffer_store_dwordx4 v[28:31], v20, s[36:39], s{S_T0} offen offset:16
        buffer_store_dwordx4 v[32:35], v20, s[36:39], s{S_T0} offen offset:32
        buffer_store_dwordx4 v[36:39], v20, s[36:39], s{S_T0} offen offset:48
        """)
    a.label("Lk2_end")
    a("s_endpgm")
    for l in rare_blocks: a.raw(l)
    return kernel_desc("attn_kernel", NVGPR + NAGPR, sgpr=80, accum=NVGPR)
```

```python
from genlib import *
from gen_small import *
import struct, os
XF = set(os.environ.get('XF', '').split(','))
def f32hex(x): return struct.unpack("<I", struct.pack("<f", x))[0]
THR = 5.5

V_KA = 1; V_VA = 9; V_KDMA = 13; V_VDMA = 14
def V_MTHR(q): return 15 + 5 * q
def V_NMC(q): return 16 + 5 * q
def V_F(q): return 17 + 5 * q
def V_M(q): return 18 + 5 * q
def V_MX(q): return 19 + 5 * q
T0 = 25
V_RING = 32; NRING = 8
def V_P(q): return 64 + 16 * q
def V_S(buf, q): return 96 + 64 * buf + 32 * q
V_SEL = 224
def V_LA(q): return 228 + 4 * q
V_PA = 236; V_PA2 = 240; V_WDMA = 244; V_LANE16 = 245; V_PF = 246
NVGPR = 248; NAGPR = 192
def A_Q(q, ks): return 32 * q + 4 * ks
def A_O(q, t): return 64 + 64 * q + 16 * t
KSLOT = [i * 16384 for i in range(4)]
VSLOT = [65536 + i * 16384 for i in range(4)]
S_HEAD = 3; S_QB = 4; S_W = 5; S_W1K = 6
S_SRDK = 8; S_SRDV = 12; S_SRDW = 16; S_SRDH = 20; S_SRDO = 24
S_KOFF = 28; S_VOFF = 29; S_T0 = 30; S_T1 = 31; S_CNT = 32; S_T2 = 34; S_FLAG = 35; S_L2E = 44; S_SCALE = 46

def ring(g): return V_RING + 4 * (g % NRING)

def dma1(srdreg, voff, soff_sgpr, extra, ldsaddr):
    out = [f"s_add_u32 m0, s{S_W1K}, {ldsaddr}"]
    if extra:
        out.append(f"s_add_u32 s{S_T0}, s{soff_sgpr}, {extra}"); so = S_T0
    else:
        out.append("s_nop 0"); so = soff_sgpr
    out.append(f"buffer_load_dwordx4 v{voff}, s[{srdreg}:{srdreg+3}], s{so} offen lds")
    return out
def dma_kv(kind, slot):
    srdreg, voff, so, base = (S_SRDK, V_KDMA, S_KOFF, KSLOT[slot]) if kind == 'k' else (S_SRDV, V_VDMA, S_VOFF, VSLOT[slot])
    g = [dma1(srdreg, voff, so, x * 4096, base + x * 4096) for x in range(4)]
    g[3].append(f"s_add_u32 s{so}, s{so}, 16384")
    return g

def kread(g, slot, kb, ks):
    b = ring(g)
    return [f"ds_read_b128 v[{b}:{b+3}], v{V_KA+ks} offset:{KSLOT[slot] + kb*8192}"]
def vread(g, slot, s, t):
    b = ring(g); off = VSLOT[slot] - 65536 + s * 4096
    return [f"ds_read_b64_tr_b16 v[{b}:{b+1}], v{V_VA+t} offset:{off}",
            f"ds_read_b64_tr_b16 v[{b+2}:{b+3}], v{V_VA+t} offset:{off+2048}"]
def wread(g, ldsbase, s, t):
    b = ring(g); off = ldsbase + s * 4096; ar = V_PA + t
    if off >= 65536: off -= 65536; ar = V_PA2 + t
    return [f"ds_read_b64_tr_b16 v[{b}:{b+1}], v{ar} offset:{off}",
            f"ds_read_b64_tr_b16 v[{b+2}:{b+3}], v{ar} offset:{off+1024}"]
def hfrag(c, s, q):
    b = 64 + 32 * (c % 4) + 16 * q + 4 * s
    return f"a[{b}:{b+3}]"

def emit_seq(a, items, pre_issued, fillers, tail_reads):
    D = NRING
    allreads = [r for (_, r) in items] + tail_reads
    n = len(items); issued = pre_issued; slot = 0
    while issued < min(D, len(allreads)):
        for r in allreads[issued]: a(r)
        issued += 1
    for i in range(n):
        cnt = sum(len(allreads[k]) for k in range(i + 1, issued))
        a(f"s_waitcnt lgkmcnt({cnt})")
        ms = items[i][0]
        for k, m in enumerate(ms):
            a(m)
            if k == len(ms) - 1 and issued < len(allreads) and issued == i + D:
                for r in allreads[issued]: a(r)
                issued += 1
            for f in fillers.get(slot, []): a(f)
            slot += 1
    return issued - n

def gen_k2(a):
    kernel_begin(a, "attn_kernel")
    a(f"""
    s_cmp_ge_u32 s2, 256
    s_cbranch_scc1 Lk2_end
    s_load_dwordx2 s[36:37], s[0:1], 8
    s_load_dwordx2 s[38:39], s[0:1], 16
    s_load_dwordx2 s[40:41], s[0:1], 24
    s_load_dwordx2 s[42:43], s[0:1], 112
    s_load_dwordx2 s[64:65], s[0:1], 32
    s_load_dwordx4 s[68:71], s[0:1], 56
    s_load_dwordx2 s[66:67], s[0:1], 72
    s_and_b32 s{S_HEAD}, s2, 7
    s_lshr_b32 s{S_T0}, s2, 6
    s_lshl_b32 s{S_T0}, s{S_T0}, 3
    s_or_b32 s{S_HEAD}, s{S_HEAD}, s{S_T0}
    s_lshr_b32 s{S_QB}, s2, 3
    s_and_b32 s{S_QB}, s{S_QB}, 7
    v_lshrrev_b32 v1, 6, v0
    s_nop 0
    v_readfirstlane_b32 s{S_W}, v1
    v_and_b32 v0, 63, v0
    s_lshl_b32 s{S_W1K}, s{S_W}, 10
    s_mov_b32 s{S_SCALE}, {f32hex(128 ** -0.5):#x}
    s_mov_b32 s{S_L2E}, {f32hex(1.4426950408889634):#x}
    """)
    if 'stamp' in XF:
        a("s_memtime s[48:49]"); a("s_memrealtime s[60:61]")
    a(f"""
    v_lshlrev_b32 v{V_LANE16}, 4, v0
    v_lshrrev_b32 v25, 4, v0
    v_and_b32 v26, 15, v0
    s_lshl_b32 s{S_T0}, s{S_W}, 2
    v_add_u32 v27, s{S_T0}, v25
    v_and_b32 v27, 15, v27
    v_xor_b32 v27, v27, v26
    v_lshlrev_b32 v27, 4, v27
    v_lshlrev_b32 v28, 8, v25
    v_add_u32 v27, v27, v28
    v_add_u32 v{V_KDMA}, s{S_W1K}, v27
    v_lshlrev_b32 v27, 2, v25
    v_xor_b32 v27, v27, v26
    v_lshlrev_b32 v27, 4, v27
    v_add_u32 v{V_VDMA}, v27, v28
    v_add_u32 v{V_VDMA}, s{S_W1K}, v{V_VDMA}
    v_lshlrev_b32 v28, 13, v25
    v_add_u32 v{V_WDMA}, v27, v28
    s_lshl_b32 s{S_T0}, s{S_W}, 15
    v_add_u32 v{V_WDMA}, s{S_T0}, v{V_WDMA}
    v_and_b32 v25, 31, v0
    v_lshlrev_b32 v25, 8, v25
    v_lshrrev_b32 v27, 5, v0
    v_xor_b32 v28, v27, v26
    v_lshlrev_b32 v28, 4, v28
    v_add_u32 v{V_KA}, v25, v28
    """)
    for ks in range(1, 8):
        a(f"v_xor_b32 v{V_KA+ks}, {ks*32}, v{V_KA}")
    a(f"""
    v_lshrrev_b32 v25, 2, v26
    v_lshrrev_b32 v28, 4, v0
    v_and_b32 v28, 1, v28
    v_lshlrev_b32 v28, 5, v28
    v_and_b32 v26, 3, v0
    v_lshlrev_b32 v26, 3, v26
    v_add_u32 v26, v26, v28
    v_lshlrev_b32 v28, 8, v25
    v_add_u32 v26, v26, v28
    v_lshlrev_b32 v28, 10, v27
    """)
    for t in range(4):
        a(f"v_xor_b32 v{V_VA+t}, {t}, v25")
        a(f"v_lshlrev_b32 v{V_VA+t}, 6, v{V_VA+t}")
        a(f"v_add_u32 v{V_VA+t}, v{V_VA+t}, v26")
        a(f"v_add_u32 v{V_VA+t}, v{V_VA+t}, v28")
        a(f"v_add_u32 v{V_PA+t}, v{V_VA+t}, v28")
        a(f"v_add_u32 v{V_VA+t}, 0x10000, v{V_VA+t}")
        a(f"v_add_u32 v{V_PA2+t}, 0x10000, v{V_PA+t}")
    a("s_waitcnt lgkmcnt(0)")
    a(f"""
    s_lshl_b32 s{S_T0}, s{S_HEAD}, 19
    s_add_u32 s{S_SRDK}, s36, s{S_T0}
    s_addc_u32 s{S_SRDK+1}, s37, 0
    s_mov_b32 s{S_SRDK+2}, 0x80000
    s_mov_b32 s{S_SRDK+3}, 0x00020000
    s_add_u32 s{S_SRDV}, s38, s{S_T0}
    s_addc_u32 s{S_SRDV+1}, s39, 0
    s_mov_b32 s{S_SRDV+2}, 0x80000
    s_mov_b32 s{S_SRDV+3}, 0x00020000
    s_lshl_b32 s{S_T0}, s{S_HEAD}, 8
    s_add_u32 s{S_SRDW}, s40, s{S_T0}
    s_addc_u32 s{S_SRDW+1}, s41, 0
    s_sub_u32 s{S_SRDW+2}, 0x400000, s{S_T0}
    s_mov_b32 s{S_SRDW+3}, 0x00020000
    s_lshl_b32 s76, s2, 2
    s_add_u32 s76, s76, s{S_W}
    s_mov_b32 s72, s64
    s_mov_b32 s73, s65
    s_mov_b32 s74, 0x400000
    s_mov_b32 s75, 0x00020000
    s_lshl_b32 s77, s76, 14
    s_cmp_ge_u32 s76, 256
    s_cselect_b32 s72, s68, s72
    s_cselect_b32 s73, s69, s73
    s_cselect_b32 s74, 0x1c0000, s74
    s_cselect_b32 s78, 0x400000, 0
    s_cmp_ge_u32 s76, 368
    s_cselect_b32 s72, s70, s72
    s_cselect_b32 s73, s71, s73
    s_cselect_b32 s78, 0x5c0000, s78
    s_cmp_ge_u32 s76, 480
    s_cselect_b32 s72, s66, s72
    s_cselect_b32 s73, s67, s73
    s_cselect_b32 s78, 0x780000, s78
    s_sub_u32 s77, s77, s78
    s_add_u32 s79, s77, 8192
    """)
    srd(a, S_SRDH, 42, 2048 * 512 * 2, WS_H1F)
    srd(a, S_SRDO, 42, 2048 * 4096 * 2, WS_OF)
    wslot = [KSLOT[0], KSLOT[1], KSLOT[2], VSLOT[0], VSLOT[1], KSLOT[3], VSLOT[2], VSLOT[3]]
    a(f"""
    s_mov_b32 s{S_T1}, 0
    s_lshl_b32 s{S_T2}, s{S_QB}, 3
    s_lshl_b32 s{S_T0}, s{S_W}, 1
    s_add_u32 s{S_T2}, s{S_T2}, s{S_T0}
    s_lshl_b32 s{S_T2}, s{S_T2}, 15
    s_add_u32 s33, s{S_T2}, 32768
    """)
    def chunk_loads(c):
        groups = [dma1(S_SRDW, V_WDMA, S_T1, x * 131072, wslot[c] + x * 4096) for x in range(4)]
        groups[3].append(f"s_add_u32 s{S_T1}, s{S_T1}, 524288")
        for q in range(2):
            so = S_T2 if q == 0 else 33
            for s_ in range(4):
                g_ = [f"buffer_load_dwordx4 {hfrag(c, s_, q)}, v{V_LANE16}, s[{S_SRDH}:{S_SRDH+3}], s{so} offen offset:{s_*1024}"]
                if s_ == 3: g_.append(f"s_add_u32 s{so}, s{so}, 4096")
                groups.append(g_)
        return groups
    for c in range(3):
        for g_ in chunk_loads(c):
            for t in g_: a(t)
    a(f"s_mov_b32 s{S_KOFF}, 0")
    a(f"s_mov_b32 s{S_VOFF}, 0")
    if 'stamp' in XF: a("s_memtime s[50:51]")
    kvq = [('k', 0), ('k', 1), ('k', 2), ('v', 0), ('v', 1), ('k', 3), ('v', 2)]
    a("s_waitcnt vmcnt(12)")
    a("s_barrier")
    g = 0; items = []; fill = {}
    for c in range(8):
        for s_ in range(4):
            for t in range(4):
                b = ring(g); ms = []
                for q in range(2):
                    d = 96 + 64 * q + 16 * t
                    csrc = "0" if (c == 0 and s_ == 0) else f"v[{d}:{d+15}]"
                    ms.append(f"v_mfma_f32_32x32x16_bf16 v[{d}:{d+15}], v[{b}:{b+3}], {hfrag(c, s_, q)}, {csrc}")
                items.append((ms, wread(g, wslot[c], s_, t))); g += 1
        nops = 0; pos = 32 * c; k = 0
        if c >= 1:
            for g_ in dma_kv(*kvq[c - 1]):
                fill[pos + k] = g_; k += 1
            nops += 4
        if c + 3 < 8:
            for g_ in chunk_loads(c + 3):
                fill[pos + k] = g_; k += 2
            nops += 12
        if c < 7:
            fill[pos + 31] = [f"s_waitcnt vmcnt({nops})", "s_barrier"]
    emit_seq(a, items, 0, fill, [])
    if 'stamp' in XF: a("s_memtime s[52:53]")
    a("s_nop 15")
    for q in range(2):
        for t in range(4):
            for hh in range(2):
                base = 96 + 64 * q + 16 * t + 8 * hh
                for x in range(4):
                    a(f"v_cvt_pk_bf16_f32 v{T0+x}, v{base+2*x}, v{base+2*x+1}")
                a("s_nop 1")
                a(f"v_permlane32_swap_b32 v{T0}, v{T0+2}")
                a(f"v_permlane32_swap_b32 v{T0+1}, v{T0+3}")
                a("s_nop 1")
                for x in range(4):
                    a(f"v_accvgpr_write_b32 a{A_Q(q, 2*t+hh)+x}, v{T0+x}")
    for i in range(128):
        a(f"v_accvgpr_write_b32 a{64+i}, 0")
    for q in range(2):
        a(f"""
        v_mov_b32 v{V_M(q)}, 0xff800000
        v_mov_b32 v{V_MTHR(q)}, 0xff800000
        v_mov_b32 v{V_NMC(q)}, 0
        v_mov_b32 v{V_F(q)}, 1.0
        v_mov_b32 v{V_LA(q)}, 0
        v_mov_b32 v{V_LA(q)+1}, 0
        v_mov_b32 v{V_LA(q)+2}, 0
        v_mov_b32 v{V_LA(q)+3}, 0
        """)
    a(f"""
    v_lshrrev_b32 v25, 4, v0
    v_xor_b32 v25, v25, v0
    v_and_b32 v25, 1, v25
    v_cmp_eq_u32 vcc, 0, v25
    v_mov_b32 v26, 0x3f803f80
    s_nop 1
    v_cndmask_b32 v{V_SEL}, 0, v26, vcc
    v_cndmask_b32 v{V_SEL+1}, 0, v26, vcc
    v_cndmask_b32 v{V_SEL+2}, 0, v26, vcc
    v_cndmask_b32 v{V_SEL+3}, 0, v26, vcc
    s_waitcnt vmcnt(20)
    s_barrier
    """)
    gctr = [0]
    def qk_items(tile, buf):
        items = []
        for kb in range(2):
            for ks in range(8):
                gg = gctr[0]; gctr[0] += 1; b = ring(gg); ms = []
                for q in range(2):
                    d = V_S(buf, q) + 16 * kb
                    csrc = "0" if ks == 0 else f"v[{d}:{d+15}]"
                    ms.append(f"v_mfma_f32_32x32x16_bf16 v[{d}:{d+15}], v[{b}:{b+3}], a[{A_Q(q,ks)}:{A_Q(q,ks)+3}], {csrc}")
                items.append((ms, kread(gg, tile % 4, kb, ks)))
        return items
    def pv_items(tile):
        items = []
        for s in range(4):
            for t in range(4):
                gg = gctr[0]; gctr[0] += 1; b = ring(gg); ms = []
                for q in range(2):
                    d = A_O(q, t)
                    ms.append(f"v_mfma_f32_32x32x16_bf16 a[{d}:{d+15}], v[{b}:{b+3}], v[{V_P(q)+4*s}:{V_P(q)+4*s+3}], a[{d}:{d+15}]")
                items.append((ms, vread(gg, tile % 4, s, t)))
        return items
    def peek_k_reads(tile):
        save = gctr[0]; it = qk_items(tile, 0); gctr[0] = save
        return [r for (_, r) in it[:NRING]]
    def prep_ops1(buf, q, pairs):
        b = V_S(buf, q); ops = []; n = len(pairs)
        for k in range(n + 3):
            if k < n:
                i = pairs[k]
                ops += [(f"v_cvt_pk_bf16_f32 v{b+2*i}, 0, v{b+2*i}", 1), (f"v_cvt_pk_bf16_f32 v{b+2*i+1}, 0, v{b+2*i+1}", 1)]
            if 0 <= k - 1 < n:
                i = pairs[k - 1]
                ops += [(f"v_mul_f32 v{b+2*i}, s{S_SCALE}, v{b+2*i}", 1), (f"v_mul_f32 v{b+2*i+1}, s{S_SCALE}, v{b+2*i+1}", 1)]
            if 0 <= k - 2 < n:
                i = pairs[k - 2]
                ops += [(f"v_cvt_pk_bf16_f32 v{b+2*i}, 0, v{b+2*i}", 1), (f"v_cvt_pk_bf16_f32 v{b+2*i+1}, 0, v{b+2*i+1}", 1)]
            if 0 <= k - 3 < n:
                i = pairs[k - 3]
                if i == 0: ops.append((f"v_max_f32 v{V_MX(q)}, v{b}, v{b+1}", 1))
                else: ops.append((f"v_max3_f32 v{V_MX(q)}, v{V_MX(q)}, v{b+2*i}, v{b+2*i+1}", 1))
        return ops
    def post_ops1(buf, q):
        b = V_S(buf, q); ops = []
        for k in range(18):
            if k < 16:
                i = k
                ops += [(f"v_fma_f32 v{b+2*i}, v{b+2*i}, s{S_L2E}, v{V_NMC(q)}", 1), (f"v_fma_f32 v{b+2*i+1}, v{b+2*i+1}, s{S_L2E}, v{V_NMC(q)}", 1)]
            if 0 <= k - 1 < 16:
                i = k - 1
                ops += [(f"v_exp_f32 v{b+2*i}, v{b+2*i}", 2), (f"v_exp_f32 v{b+2*i+1}, v{b+2*i+1}", 2)]
            if 0 <= k - 2 < 16:
                i = k - 2
                ops.append((f"v_cvt_pk_bf16_f32 v{V_P(q)+i}, v{b+2*i}, v{b+2*i+1}", 1))
        return ops
    def zipops(l0, l1):
        out = []
        for x, y in zip(l0, l1): out += [x, y]
        return out
    def prep_ops(buf, pairs): return zipops(prep_ops1(buf, 0, pairs), prep_ops1(buf, 1, pairs))
    def post_ops(buf): return zipops(post_ops1(buf, 0), post_ops1(buf, 1))
    def spread(ops, nslots):
        tot = sum(w for _, w in ops); out = [[] for _ in range(nslots)]; acc = 0
        for t, w in ops:
            out[min(nslots - 1, int((acc + w / 2) * nslots / tot))].append(t); acc += w
        return out
    NPB = 12; PREP0 = 20
    rare_blocks = []
    def rare1(q, lr, lb):
        body = f"""
        v_max_f32 v{V_MX(q)}, v{V_MX(q)}, v{V_M(q)}
        v_mov_b32 v25, v{V_MX(q)}
        v_mov_b32 v26, v{V_MX(q)}
        s_nop 1
        v_permlane32_swap_b32 v25, v26
        s_nop 1
        v_max_f32 v{V_MX(q)}, v25, v26
        v_sub_f32 v25, v{V_M(q)}, v{V_MX(q)}
        v_mul_f32 v25, s{S_L2E}, v25
        v_exp_f32 v{V_F(q)}, v25
        v_mov_b32 v{V_M(q)}, v{V_MX(q)}
        v_mul_f32 v{V_NMC(q)}, s{S_L2E}, v{V_MX(q)}
        v_sub_f32 v{V_NMC(q)}, 0, v{V_NMC(q)}
        v_add_f32 v{V_MTHR(q)}, {f32hex(THR):#x}, v{V_MX(q)}
        s_mov_b32 s{S_FLAG}, 1
        s_branch {lb}
        """
        return [f"{lr}:"] + ["    " + l.strip() for l in body.strip().split("\n")]
    def rare2(lr, lb):
        r = [f"{lr}:", "    s_nop 15"]
        for q in range(2):
            for i in range(64):
                r += [f"    v_accvgpr_read_b32 v26, a{A_O(q,0)+i}", f"    v_mul_f32 v26, v26, v{V_F(q)}", f"    v_accvgpr_write_b32 a{A_O(q,0)+i}, v26"]
            r += [f"    v_mov_b32 v25, v{V_F(q)}", f"    v_mov_b32 v26, v{V_F(q)}", "    s_nop 1",
                  "    v_permlane16_swap_b32 v25, v26", "    s_nop 1",
                  f"    v_mul_f32 v{V_LA(q)}, v{V_LA(q)}, v25", f"    v_mul_f32 v{V_LA(q)+1}, v{V_LA(q)+1}, v26",
                  f"    v_mul_f32 v{V_LA(q)+2}, v{V_LA(q)+2}, v25", f"    v_mul_f32 v{V_LA(q)+3}, v{V_LA(q)+3}, v26",
                  f"    v_mov_b32 v{V_F(q)}, 1.0"]
        r += [f"    s_mov_b32 s{S_FLAG}, 0", "    s_nop 1", f"    s_branch {lb}"]
        return r
    def check1():
        out = []
        for q in range(2):
            lr = a.newlabel("rareA"); lb = a.newlabel("backA")
            rare_blocks.extend(rare1(q, lr, lb))
            out += [f"v_cmp_gt_f32 vcc, v{V_MX(q)}, v{V_MTHR(q)}", f"s_cbranch_vccnz {lr}", f"{lb}:"]
        return out
    def check2():
        lr = a.newlabel("rareB"); lb = a.newlabel("backB")
        rare_blocks.extend(rare2(lr, lb))
        return [f"s_cmp_lg_u32 s{S_FLAG}, 0", f"s_cbranch_scc1 {lr}", f"{lb}:"]
    def msum(q, s_):
        return f"v_mfma_f32_16x16x32_bf16 v[{V_LA(q)}:{V_LA(q)+3}], v[{V_SEL}:{V_SEL+3}], v[{V_P(q)+4*s_}:{V_P(q)+4*s_+3}], v[{V_LA(q)}:{V_LA(q)+3}]"

    a(f"s_mov_b32 s{S_FLAG}, 0")
    pre = emit_seq(a, qk_items(0, 0), 0, {}, peek_k_reads(1))
    a("s_nop 15")
    for t, w in prep_ops(0, list(range(16))): a(t)
    for t in check1(): a(t)
    a(f"s_mov_b32 s{S_FLAG}, 0")
    a(f"v_mov_b32 v{V_F(0)}, 1.0")
    a(f"v_mov_b32 v{V_F(1)}, 1.0")
    for gl in spread(post_ops(0), 32)[:NPB]:
        for t in gl: a(t)

    def iteration(j, pre, last=False, vm=8, do_k=True, do_v=True):
        cur = j & 1; nxt = 1 - cur
        a(f"s_waitcnt vmcnt({vm})")
        a("s_barrier")
        postc = spread(post_ops(cur), 32)[NPB:]
        if not last:
            fill = {i: [] for i in range(64)}
            for k, gl in enumerate(postc): fill[k] += gl
            nprep = 64 - NPB - PREP0
            p0 = spread(prep_ops(nxt, list(range(8))), nprep // 2)
            p1 = spread(prep_ops(nxt, list(range(8, 16))), nprep - nprep // 2)
            for k, gl in enumerate(p0 + p1): fill[PREP0 + k] += gl
            fill[64 - NPB - 1] += check1()
            for k, gl in enumerate(spread(post_ops(nxt), 32)[:NPB]): fill[64 - NPB + k] += gl
            for s_ in range(4):
                for q in range(2):
                    fill[32 + 8 * s_ + 2 + 2 * q] = [msum(q, s_)] + fill[32 + 8 * s_ + 2 + 2 * q]
            fill[63] += check2()
            if do_k:
                for k, g_ in enumerate(dma_kv('k', j % 4)): fill[1 + 2 * k] = fill[1 + 2 * k] + g_
            if do_v:
                for k, g_ in enumerate(dma_kv('v', (j + 3) % 4)): fill[10 + 2 * k] = fill[10 + 2 * k] + g_
            if j == 28:
                fill[19] = fill[19] + [f"v_lshlrev_b32 v{V_PF+1}, 3, v{V_LANE16}", f"buffer_load_dword v{V_PF}, v{V_PF+1}, s[72:75], s77 offen",
                                       f"buffer_load_dword v{V_PF}, v{V_PF+1}, s[72:75], s79 offen"]
            itemsA = qk_items(j + 1, nxt); itemsB = pv_items(j)
            nx = peek_k_reads(j + 2) if not iteration.no_next else []
            pre = emit_seq(a, itemsA + itemsB, pre, fill, nx)
        else:
            for gl in postc:
                for t in gl: a(t)
            a("s_nop 1")
            fl = {}
            for s_ in range(4):
                for q in range(2): fl[8 * s_ + 2 + 2 * q] = [msum(q, s_)]
            pre = emit_seq(a, pv_items(j), 0, fl, [])
        return pre
    iteration.no_next = False
    a(f"s_mov_b32 s{S_CNT}, 7")
    if 'stamp' in XF: a("s_memtime s[54:55]")
    a.label("Lk2_loop")
    p = pre
    for jj in range(4): p = iteration(jj, p)
    assert p == pre and gctr[0] % NRING == 0
    a(f"s_sub_u32 s{S_CNT}, s{S_CNT}, 1")
    a(f"s_cmp_lg_u32 s{S_CNT}, 0")
    a("s_cbranch_scc1 Lk2_loop")
    p = iteration(28, p, vm=8, do_k=False, do_v=True)
    p = iteration(29, p, vm=6, do_k=False, do_v=False)
    iteration.no_next = True
    p = iteration(30, p, vm=0, do_k=False, do_v=False)
    p = iteration(31, p, last=True, vm=0)
    if 'stamp' in XF: a("s_memtime s[56:57]")
    a(f"""
    v_and_b32 v25, 16, v0
    v_cmp_eq_u32 vcc, 0, v25
    s_lshl_b32 s{S_T2}, s{S_QB}, 3
    s_lshl_b32 s{S_T0}, s{S_W}, 1
    s_add_u32 s{S_T2}, s{S_T2}, s{S_T0}
    s_lshl_b32 s{S_T2}, s{S_T2}, 18
    s_lshl_b32 s{S_T0}, s{S_HEAD}, 13
    s_add_u32 s{S_T2}, s{S_T2}, s{S_T0}
    s_nop 15
    v_cndmask_b32 v25, v{V_LA(0)+1}, v{V_LA(0)}, vcc
    v_cndmask_b32 v26, v{V_LA(1)+1}, v{V_LA(1)}, vcc
    v_rcp_f32 v25, v25
    v_rcp_f32 v26, v26
    s_nop 0
    """)
    for q in range(2):
        for t in range(4):
            for hh in range(2):
                rb = 96 + 64 * q + 8 * (2 * t + hh)
                for x in range(8): a(f"v_accvgpr_read_b32 v{rb+x}, a{A_O(q,t)+8*hh+x}")
                for x in range(8): a(f"v_mul_f32 v{rb+x}, v{rb+x}, v{25+q}")
                for x in range(4): a(f"v_cvt_pk_bf16_f32 v{rb+x}, v{rb+2*x}, v{rb+2*x+1}")
                k = 2 * t + hh
                if k == 4: a(f"s_add_u32 s{S_T2}, s{S_T2}, 4096")
                a(f"buffer_store_dwordx4 v[{rb}:{rb+3}], v{V_LANE16}, s[{S_SRDO}:{S_SRDO+3}], s{S_T2} offen offset:{(k%4)*1024}")
        if q == 0: a(f"s_add_u32 s{S_T2}, s{S_T2}, {262144 - 4096}")
    if 'stamp' in XF:
        a("s_waitcnt vmcnt(0)"); a("s_memtime s[58:59]"); a("s_memrealtime s[62:63]"); a("s_waitcnt lgkmcnt(0)")
        srd(a, 36, 42, 1 << 20, 80 << 20)
        for i in range(16): a(f"v_mov_b32 v{32+i}, s{48+i}")
        a(f"""
        s_lshl_b32 s{S_T0}, s2, 3
        s_add_u32 s{S_T0}, s{S_T0}, s{S_W}
        s_lshl_b32 s{S_T0}, s{S_T0}, 6
        s_add_u32 s{S_T1}, s{S_T0}, 256
        v_mov_b32 v25, 0
        s_mov_b64 exec, 1
        buffer_store_dwordx4 v[32:35], v25, s[36:39], s{S_T0} offen
        buffer_store_dwordx4 v[36:39], v25, s[36:39], s{S_T0} offen offset:16
        buffer_store_dwordx4 v[40:43], v25, s[36:39], s{S_T0} offen offset:32
        buffer_store_dwordx4 v[44:47], v25, s[36:39], s{S_T0} offen offset:48
        buffer_store_dwordx4 v[32:35], v25, s[36:39], s{S_T1} offen
        buffer_store_dwordx4 v[36:39], v25, s[36:39], s{S_T1} offen offset:16
        buffer_store_dwordx4 v[40:43], v25, s[36:39], s{S_T1} offen offset:32
        buffer_store_dwordx4 v[44:47], v25, s[36:39], s{S_T1} offen offset:48
        """)
    a.label("Lk2_end")
    a("s_endpgm")
    for l in rare_blocks: a.raw(l)
    return kernel_desc("attn_kernel", NVGPR + NAGPR, sgpr=88, accum=NVGPR)
```

```python
from genlib import *
from gen_small import *
import gen_moe2, os

def gen_oproj2(a):
    kernel_begin(a, "oproj_kernel")
    S_W = 3; S_MT = 4; S_NT = 5; S_KSP = 6; S_T0 = 7
    S_SRDW = 8; S_SRDO = 12; S_SRDP = 16; S_WOFF = 20; S_OOFF = 21; S_T1 = 22; S_W1K = 23; S_W4K = 24
    V_WDMA = 1; V_L16 = 2; V_AA = 4; V_AA2 = 5; V_BA = 6; V_BA2 = 3
    V_F = 8
    V_ACC = 48
    STG = 24576; NS = 5; NST = 32
    a(f"""
    s_cmp_ge_u32 s2, 256
    s_cbranch_scc1 Lk3_end
    s_load_dwordx2 s[36:37], s[0:1], 32     ; wo
    s_load_dwordx2 s[42:43], s[0:1], 112    ; ws
    s_and_b32 s{S_T0}, s2, 7
    s_and_b32 s{S_KSP}, s{S_T0}, 1
    s_lshr_b32 s{S_T0}, s{S_T0}, 1
    s_lshl_b32 s{S_MT}, s{S_T0}, 2
    s_lshr_b32 s{S_T0}, s2, 3
    s_and_b32 s{S_NT}, s{S_T0}, 7
    s_lshr_b32 s{S_T0}, s{S_T0}, 3
    s_add_u32 s{S_MT}, s{S_MT}, s{S_T0}
    v_lshrrev_b32 v1, 6, v0
    s_nop 0
    v_readfirstlane_b32 s{S_W}, v1
    v_and_b32 v0, 63, v0
    s_lshl_b32 s{S_W1K}, s{S_W}, 10
    s_lshl_b32 s{S_W4K}, s{S_W}, 12
    v_lshlrev_b32 v{V_L16}, 4, v0
    v_lshrrev_b32 v20, 3, v0
    v_and_b32 v21, 7, v0
    v_lshrrev_b32 v22, 1, v20
    v_and_b32 v22, 1, v22
    v_lshlrev_b32 v22, 2, v22
    v_xor_b32 v22, v22, v21
    v_lshlrev_b32 v22, 4, v22
    v_lshlrev_b32 v23, 10, v20
    v_add_u32 v{V_WDMA}, v22, v23
    ; tr addr: (4u + r)*128 + ((wn ^ ((r>>1)&1))*64) + 32g + 8c
    v_and_b32 v21, 15, v0
    v_lshrrev_b32 v20, 2, v21           ; r
    v_lshrrev_b32 v22, 5, v0            ; u
    v_lshlrev_b32 v22, 2, v22
    v_add_u32 v22, v22, v20
    v_lshlrev_b32 v22, 7, v22
    v_lshrrev_b32 v23, 4, v0
    v_and_b32 v23, 1, v23
    v_lshlrev_b32 v23, 5, v23
    v_add_u32 v22, v22, v23
    v_and_b32 v23, 3, v0
    v_lshlrev_b32 v23, 3, v23
    v_add_u32 v22, v22, v23
    v_lshrrev_b32 v23, 1, v20
    s_and_b32 s{S_T0}, s{S_W}, 1
    v_xor_b32 v23, s{S_T0}, v23
    v_lshlrev_b32 v23, 6, v23
    v_add_u32 v{V_AA}, v22, v23
    v_add_u32 v{V_AA2}, 0x10000, v{V_AA}
    s_lshr_b32 s{S_T0}, s{S_W}, 1
    s_lshl_b32 s{S_T0}, s{S_T0}, 13
    s_add_u32 s{S_T0}, s{S_T0}, 8192
    v_add_u32 v{V_BA}, s{S_T0}, v{V_L16}
    v_add_u32 v{V_BA2}, 0x10000, v{V_BA}
    s_waitcnt lgkmcnt(0)
    """)
    srd(a, S_SRDW, 36, 4096 * 512 * 2)
    srd(a, S_SRDO, 42, 2048 * 4096 * 2, WS_OF)
    srd(a, S_SRDP, 42, 2 * 2048 * 512 * 4, WS_PART)
    a(f"""
    s_cmp_lt_u32 s{S_W}, 4
    s_cbranch_scc1 Lk3_main
    s_cmp_ge_u32 s2, 16
    s_cbranch_scc1 Lk3_noz
    s_add_u32 s44, s42, {gen_moe2.WS_Y}
    s_addc_u32 s45, s43, 0
    s_mov_b32 s46, 16384
    s_mov_b32 s47, 0x00020000
    v_mov_b32 v60, 0
    v_mov_b32 v61, 0
    v_mov_b32 v62, 0
    v_mov_b32 v63, 0
    s_lshl_b32 s{S_T0}, s2, 10
    buffer_store_dwordx4 v[60:63], v{V_L16}, s[44:47], s{S_T0} offen
Lk3_noz:
    v_lshrrev_b32 v20, 4, v0
    v_and_b32 v21, 15, v0
    v_lshlrev_b32 v22, 12, v20
    v_lshlrev_b32 v23, 7, v21
    v_add_u32 v22, v22, v23
    v_lshlrev_b32 v24, 16, v20
    v_lshlrev_b32 v23, 10, v21
    v_add_u32 v24, v24, v23
    s_lshl_b32 s{S_T0}, s{S_MT}, 2
    s_lshr_b32 s{S_T1}, s{S_NT}, 1
    s_add_u32 s{S_T0}, s{S_T0}, s{S_T1}
    s_lshl_b32 s{S_T0}, s{S_T0}, 18
    s_lshl_b32 s{S_T1}, s{S_KSP}, 17
    s_add_u32 s{S_T0}, s{S_T0}, s{S_T1}
    s_and_b32 s{S_T1}, s{S_NT}, 1
    s_lshl_b32 s{S_T1}, s{S_T1}, 11
    s_add_u32 s{S_T0}, s{S_T0}, s{S_T1}     ; o base
    s_lshl_b32 s{S_WOFF}, s{S_KSP}, 21
    s_and_b32 s{S_T1}, s{S_MT}, 3
    s_lshl_b32 s{S_T1}, s{S_T1}, 14
    s_add_u32 s{S_WOFF}, s{S_WOFF}, s{S_T1}
    s_lshl_b32 s{S_T1}, s{S_NT}, 7
    s_add_u32 s{S_WOFF}, s{S_WOFF}, s{S_T1}
    """)
    lead = int(os.environ.get('PFL', '4'))
    nb = 0
    for q in range(8):
        while nb < max(0, 4 * q - lead):
            a("s_barrier"); nb += 1
        if q > 0:
            a(f"buffer_load_dword v{28+2*q}, v24, s[{S_SRDW}:{S_SRDW+3}], s{S_WOFF} offen")
            a(f"buffer_load_dword v{29+2*q}, v22, s[{S_SRDO}:{S_SRDO+3}], s{S_T0} offen")
        a(f"s_add_u32 s{S_WOFF}, s{S_WOFF}, 262144")
        a(f"s_add_u32 s{S_T0}, s{S_T0}, 16384")
    while nb < NST:
        a("s_barrier"); nb += 1
    a("s_endpgm")
    a.label("Lk3_main")
    a(f"""
    s_lshl_b32 s{S_WOFF}, s{S_KSP}, 21
    s_lshl_b32 s{S_T0}, s{S_NT}, 7
    s_add_u32 s{S_WOFF}, s{S_WOFF}, s{S_T0}
    s_lshl_b32 s{S_T0}, s{S_W}, 13
    s_add_u32 s{S_WOFF}, s{S_WOFF}, s{S_T0}   ; + w*8 rows
    s_lshl_b32 s{S_OOFF}, s{S_MT}, 2
    s_add_u32 s{S_OOFF}, s{S_OOFF}, s{S_W}
    s_lshl_b32 s{S_OOFF}, s{S_OOFF}, 18
    s_lshl_b32 s{S_T0}, s{S_KSP}, 17
    s_add_u32 s{S_OOFF}, s{S_OOFF}, s{S_T0}
    """)
    def dma_stage(st):
        base = (st % NS) * STG
        out = []
        for x in range(2):
            out.append([f"s_add_u32 m0, s{S_W1K}, {base + x*4096}",
                        f"s_add_u32 s{S_T1}, s{S_WOFF}, {x*32768}",
                        f"buffer_load_dwordx4 v{V_WDMA}, s[{S_SRDW}:{S_SRDW+3}], s{S_T1} offen lds"])
        for x in range(4):
            g = []
            if x == 0:
                g += [f"s_add_u32 m0, s{S_W4K}, {base + 8192}", f"s_add_u32 s{S_WOFF}, s{S_WOFF}, 65536"]
            g += [f"buffer_load_dwordx4 v{V_L16}, s[{S_SRDO}:{S_SRDO+3}], s{S_OOFF} offen offset:{x*1024} lds"]
            if x == 3:
                g += [f"s_add_u32 s{S_OOFF}, s{S_OOFF}, 4096"]
            out.append(g)
        return out
    for st in range(NS - 1):
        for g in dma_stage(st):
            for t in g: a(t)
    def rd(kind, dst, off):
        lo, hi = (V_AA, V_AA2) if kind == 'tr' else (V_BA, V_BA2)
        ar = lo
        if off >= 65536 - 1024:
            off -= 65536; ar = hi
            if off < 0:
                off += 65536; ar = lo
        assert 0 <= off <= 65535, off
        return ar, off
    def read_list(gk):
        st, s = gk // 4, gk % 4
        base = (st % NS) * STG
        f = V_F + 12 * (gk % 3)
        out = []
        for h in range(2):
            ar, off = rd('tr', f, base + s * 2048 + h * 1024)
            out.append(f"ds_read_b64_tr_b16 v[{f+2*h}:{f+2*h+1}], v{ar} offset:{off}")
        for y in range(2):
            ar, off = rd('b', f, base + y * 4096 + s * 1024)
            out.append(f"ds_read_b128 v[{f+4+4*y}:{f+7+4*y}], v{ar} offset:{off}")
        return out
    NK = NST * 4
    for st in range(NST):
        rem = NST - 1 - st
        allowed = 6 * max(0, min(NS - 3, rem - 1))
        a(f"s_waitcnt vmcnt({allowed})")
        a("s_barrier")
        if st == 0:
            for t in read_list(0) + read_list(1): a(t)
        dm = dma_stage(st + NS - 1) if st + NS - 1 < NST else []
        for s in range(4):
            gk = st * 4 + s
            a(f"s_waitcnt lgkmcnt({4 if gk + 1 < NK else 0})")
            f = V_F + 12 * (gk % 3)
            rl = read_list(gk + 2) if gk + 2 < NK else []
            for y in range(2):
                d = V_ACC + 16 * y
                c = "0" if gk == 0 else f"v[{d}:{d+15}]"
                a(f"v_mfma_f32_32x32x16_bf16 v[{d}:{d+15}], v[{f+4+4*y}:{f+7+4*y}], v[{f}:{f+3}], {c}")
                for t in rl[2*y:2*y+2]: a(t)
                if dm:
                    for t in dm.pop(0): a(t)
    a(f"""
    s_nop 15
    v_and_b32 v20, 31, v0
    v_lshlrev_b32 v20, 2, v20
    v_lshrrev_b32 v21, 5, v0
    v_lshlrev_b32 v21, 13, v21
    v_add_u32 v20, v20, v21
    s_lshl_b32 s{S_T0}, s{S_KSP}, 22
    s_lshl_b32 s{S_T1}, s{S_MT}, 18
    s_add_u32 s{S_T0}, s{S_T0}, s{S_T1}
    s_lshr_b32 s{S_T1}, s{S_W}, 1
    s_lshl_b32 s{S_T1}, s{S_T1}, 17
    s_add_u32 s{S_T0}, s{S_T0}, s{S_T1}
    s_lshl_b32 s{S_T1}, s{S_NT}, 8
    s_add_u32 s{S_T0}, s{S_T0}, s{S_T1}
    s_and_b32 s{S_T1}, s{S_W}, 1
    s_lshl_b32 s{S_T1}, s{S_T1}, 7
    s_add_u32 s{S_T0}, s{S_T0}, s{S_T1}
    """)
    for y in range(2):
        for i in range(16):
            row = y * 32 + 8 * (i >> 2) + (i & 3)
            if i & 1 == 0:
                a(f"s_add_u32 s{S_T1}, s{S_T0}, {row * 2048}")
            d = V_ACC + 16 * y
            a(f"buffer_store_dword v{d+i}, v20, s[{S_SRDP}:{S_SRDP+3}], s{S_T1} offen offset:{(i&1)*2048}" + " sc1")
    a.label("Lk3_end")
    a("s_endpgm")
    return kernel_desc("oproj_kernel", 96, sgpr=64)
```

```python
from genlib import *
from gen_small import *
from gen_moe import *
from gen_moe2 import WS_Y
import os
RPW = int(os.environ.get('RPW', '1'))
NPOST = 128

def gen_postmoe(a):
    WD = 65536; RED = 98304; ACTL = 106496; FLG = 107008
    SC = " sc1"
    SL = " sc1"
    kernel_begin(a, "pm_kernel")
    a(f"""
    s_cmp_ge_u32 s2, {56 + NPOST}
    s_cbranch_scc1 Lk5_end
    s_load_dwordx2 s[4:5], s[0:1], 56     ; w_gate
    s_load_dwordx2 s[6:7], s[0:1], 64     ; w_up
    s_load_dwordx2 s[8:9], s[0:1], 112    ; ws
    s_load_dwordx2 s[10:11], s[0:1], 72   ; w_down
    s_load_dwordx2 s[64:65], s[0:1], 96   ; out
    s_load_dwordx2 s[66:67], s[0:1], 104  ; debug
    s_load_dwordx2 s[80:81], s[0:1], 0    ; x
    s_load_dwordx2 s[82:83], s[0:1], 48   ; w_r
    v_and_b32 v1, 63, v0
    v_lshrrev_b32 v2, 6, v0
    s_nop 0
    v_readfirstlane_b32 s3, v2            ; wave
    v_lshlrev_b32 v4, 4, v1               ; lane*16
    s_waitcnt lgkmcnt(0)
    """)
    srd(a, 20, 8, 2048 * 4, WS_KEY)
    srd(a, 24, 8, 2048 * 512 * 2, WS_H2)
    srd(a, 32, 8, 2048 * 512 * 2, WS_X2)
    srd(a, 60, 8, 2048 * 4, WS_R)
    srd(a, 68, 64, 2048 * 512 * 2)
    srd(a, 72, 66, 256)
    srd(a, 76, 8, 3072 * 4, WS_MOD)
    a("""
    s_cmp_lt_u32 s2, 56
    s_cbranch_scc1 Lk5_moe
    """)
    srd(a, 12, 80, 2048 * 512 * 2)
    srd(a, 16, 8, 2 * 2048 * 512 * 4, WS_PART)
    srd(a, 28, 82, 1024)
    a("""
    s_sub_u32 s36, s2, 56
    s_lshl_b32 s36, s36, 4
    s_add_u32 s36, s36, s3
    s_mul_i32 s36, s36, RPWX              ; first row of wave
    s_lshl_b32 s37, s36, 10               ; bf16 row byte offset
    s_lshl_b32 s38, s36, 11               ; fp32 row byte offset
    v_lshlrev_b32 v5, 5, v1               ; lane*32
    """.replace("RPWX", str(RPW)))
    for r in range(RPW):
        a(f"s_add_u32 s39, s38, {r*2048}")
        for p in range(2):
            b = 64 + 32 * r + 8 * p
            a(f"buffer_load_dwordx4 v[{b}:{b+3}], v5, s[16:19], s39 offen")
            a(f"buffer_load_dwordx4 v[{b+4}:{b+7}], v5, s[16:19], s39 offen offset:16")
            if p < 1: a("s_add_u32 s39, s39, 0x400000")
    a("""
    buffer_load_dwordx4 v[8:11], v4, s[12:15], s37 offen
    buffer_load_dwordx4 v[96:99], v4, s[28:31], 0 offen              ; w_r
    s_mov_b32 s39, 4096
    buffer_load_dwordx4 v[100:103], v5, s[76:79], s39 offen            ; ga
    buffer_load_dwordx4 v[104:107], v5, s[76:79], s39 offen offset:16
    buffer_load_dwordx4 v[16:19], v5, s[76:79], s39 offen offset:2048  ; sb
    buffer_load_dwordx4 v[20:23], v5, s[76:79], s39 offen offset:2064
    s_mov_b32 s39, 8192
    buffer_load_dwordx4 v[24:27], v5, s[76:79], s39 offen              ; cb
    buffer_load_dwordx4 v[28:31], v5, s[76:79], s39 offen offset:16
    buffer_load_dwordx4 v[108:111], v5, s[76:79], s39 offen offset:2048 ; gb
    buffer_load_dwordx4 v[112:115], v5, s[76:79], s39 offen offset:2064
    s_waitcnt vmcnt(0)
    """)
    for j in range(4):
        unpack_bf16(a, 116 + 2 * j, 117 + 2 * j, 96 + j)
    for r in range(RPW):
        xs = 8 if r == 0 else 128
        pb = 64 + 32 * r
        for j in range(4):
            unpack_bf16(a, 32 + 2 * j, 33 + 2 * j, xs + j)
        for j in range(8):
            a(f"v_add_f32 v{pb+j}, v{pb+j}, v{pb+8+j}")
            round_bf16(a, pb + j, pb + j)
            a(f"v_mul_f32 v{pb+j}, v{pb+j}, v{100+j}")
            round_bf16(a, pb + j, pb + j)
            a(f"v_add_f32 v{32+j}, v{32+j}, v{pb+j}")
            round_bf16(a, 32 + j, 32 + j)
        ln_mod(a, 32, 12, 24, 16, 40)
        a("v_mul_f32 v56, v40, v116")
        for j in range(1, 8):
            a(f"v_fmac_f32 v56, v{40+j}, v{116+j}")
        wave_allreduce(a, 56, 57, 58)
        round_bf16(a, 56, 56)
        for j in range(4):
            a(f"v_cvt_pk_bf16_f32 v{48+j}, v{40+2*j}, v{41+2*j}")
            a(f"v_cvt_pk_bf16_f32 v{52+j}, v{32+2*j}, v{33+2*j}")
        a(f"buffer_store_dwordx4 v[48:51], v4, s[24:27], s37 offen offset:{r*1024}{SC}")
        a(f"buffer_store_dwordx4 v[52:55], v4, s[32:35], s37 offen offset:{r*1024}{SC}")
        for j in range(8):
            a(f"v_mul_f32 v{pb+j}, v{40+j}, v{108+j}")
            round_bf16(a, pb + j, pb + j)
            a(f"v_add_f32 v{pb+j}, v{pb+j}, v{32+j}")
        for j in range(4):
            a(f"v_cvt_pk_bf16_f32 v{60+j}, v{pb+2*j}, v{pb+1+2*j}")
        a(f"buffer_store_dwordx4 v[60:63], v4, s[68:71], s37 offen offset:{r*1024}{SC}")
        a(f"""
        v_ashrrev_i32 v57, 31, v56
        v_or_b32 v57, 0x80000000, v57
        v_xor_b32 v57, v57, v56
        v_and_b32 v57, 0xffff0000, v57
        s_add_u32 s39, s36, {r}
        s_sub_u32 s40, 2047, s39
        v_or_b32 v57, s40, v57
        s_lshl_b32 s39, s39, 2
        v_mov_b32 v58, 0
        s_mov_b64 exec, 1
        buffer_store_dword v56, v58, s[60:63], s39 offen{SC}
        buffer_store_dword v57, v58, s[20:23], s39 offen{SC}
        s_mov_b64 exec, -1
        """)
    a(f"""
    s_waitcnt vmcnt(0)
    s_barrier
    s_cmp_lg_u32 s3, 0
    s_cbranch_scc1 Lk5_end
    v_mov_b32 v44, 1
    v_mov_b32 v45, 64
    s_mov_b64 exec, 1
    buffer_atomic_add v44, v45, s[72:75], 0 offen sc0 sc1
    s_waitcnt vmcnt(0)
    v_readfirstlane_b32 s36, v44
    s_nop 3
    s_cmp_lg_u32 s36, {NPOST - 1}
    s_cbranch_scc1 Lk5_end
    v_mov_b32 v44, {NPOST}
    v_mov_b32 v45, 128
    buffer_store_dword v44, v45, s[72:75], 0 offen sc0 sc1
    s_branch Lk5_end
    """)
    a.label("Lk5_moe")
    a("s_cmp_ge_u32 s3, 8")
    a("s_cbranch_scc1 Lk5_end")
    a("""
    v_lshrrev_b32 v3, 2, v1
    s_mov_b32 s36, 3584
    v_mul_lo_u32 v3, v3, s36
    v_and_b32 v44, 3, v1
    v_lshlrev_b32 v44, 4, v44
    v_add_u32 v3, v3, v44
    s_lshr_b32 s36, s3, 2
    s_cmp_eq_u32 s36, 0
    s_cselect_b32 s12, s4, s6
    s_cselect_b32 s13, s5, s7
    s_mov_b32 s14, 0x1c0000
    s_mov_b32 s15, 0x00020000
    """)
    srd(a, 16, 10, 1792 * 512 * 2)
    srd(a, 28, 8, 8 * 512 * 4, WS_Y)
    a("""
    s_and_b32 s36, s3, 3
    s_mul_i32 s37, s36, 458752            ; 128 rows * 3584
    s_lshl_b32 s38, s2, 6
    s_add_u32 s37, s37, s38
    s_lshl_b32 s38, s3, 13
    """)
    for c in range(8):
        a(f"s_add_u32 m0, s38, {c*1024}")
        a("s_nop 0")
        a("buffer_load_dwordx4 v3, s[12:15], s37 offen lds")
        if c < 7: a("s_add_u32 s37, s37, 57344")
    a("""
    s_lshl_b32 s37, s2, 15
    s_lshl_b32 s39, s3, 12
    s_add_u32 s37, s37, s39
    """)
    for i in range(4):
        a(f"v_xor_b32 v44, {i << 6}, v4")
        a(f"s_add_u32 m0, s39, {WD + i*1024}")
        a("s_nop 0")
        a("buffer_load_dwordx4 v44, s[16:19], s37 offen lds")
        if i < 3: a("s_add_u32 s37, s37, 1024")
    tr_addr64(a, 5, 1, 6, 7)
    a("v_add_u32 v5, s38, v5")
    a("v_and_b32 v6, 7, v1")
    a(f"""
    v_lshrrev_b32 v47, 5, v1             ; u
    v_and_b32 v48, 15, v1
    v_lshrrev_b32 v48, 2, v48           ; r
    v_lshlrev_b32 v49, 3, v47
    v_add_u32 v49, v49, v48
    v_lshlrev_b32 v49, 10, v49
    v_lshrrev_b32 v50, 4, v1
    v_and_b32 v50, 1, v50
    v_lshlrev_b32 v50, 5, v50
    v_add_u32 v49, v49, v50
    v_and_b32 v50, 3, v1
    v_lshlrev_b32 v50, 3, v50
    v_add_u32 v49, v49, v50
    s_lshr_b32 s37, s3, 1
    s_lshl_b32 s37, s37, 8
    s_add_u32 s37, s37, {WD}
    v_add_u32 v49, s37, v49
    s_and_b32 s37, s3, 1
    s_lshl_b32 s37, s37, 1
    v_xor_b32 v50, s37, v48
    v_lshlrev_b32 v50, 6, v50
    v_add_u32 v51, v49, v50
    s_add_u32 s37, s37, 1
    v_xor_b32 v50, s37, v48
    v_lshlrev_b32 v50, 6, v50
    v_add_u32 v52, v49, v50
    v_lshlrev_b32 v53, 6, v6
    v_lshlrev_b32 v50, 4, v47
    v_add_u32 v53, v53, v50
    v_add_u32 v53, {ACTL}, v53
    v_and_b32 v54, 31, v1
    v_lshlrev_b32 v54, 2, v54
    v_lshlrev_b32 v50, 13, v47
    v_add_u32 v54, v54, v50            ; y voffset
    v_lshlrev_b32 v55, 5, v1             ; lane*32
    s_mov_b32 s37, 10240
    buffer_load_dwordx4 v[56:59], v55, s[76:79], s37 offen
    buffer_load_dwordx4 v[60:63], v55, s[76:79], s37 offen offset:16
    v_mov_b32 v45, 128
    """)
    a("""
    s_cmp_lg_u32 s3, 0
    s_cbranch_scc1 Lk5_go
    """)
    a.label("Lk5_poll")
    a(f"""
    buffer_load_dword v44, v45, s[72:75], 0 offen sc0 sc1
    s_waitcnt vmcnt(0)
    v_readfirstlane_b32 s37, v44
    s_nop 3
    s_cmp_ge_u32 s37, {NPOST}
    s_cbranch_scc1 Lk5_go
    s_sleep 3
    s_branch Lk5_poll
    """)
    a.label("Lk5_go")
    a("s_barrier")
    K = 8; T = 40; T1 = 41; T2 = 42
    a(f"v_lshlrev_b32 v{T}, 7, v1")
    for i in range(8):
        a(f"buffer_load_dwordx4 v[{K+4*i}:{K+4*i+3}], v{T}, s[20:23], 0 offen offset:{16*i}{SL}")
    a("s_waitcnt vmcnt(0)")
    top8k_compute(a, K, T, T1, T2, 40, 48)
    sel8(a, 7, 6, 44, 40)
    a("""
    v_lshlrev_b32 v7, 10, v7
    v_lshrrev_b32 v44, 5, v1
    v_lshlrev_b32 v44, 4, v44
    v_add_u32 v7, v7, v44
    s_lshl_b32 s37, s36, 8
    """)
    for s in range(8):
        a(f"buffer_load_dwordx4 v[{64+4*s}:{67+4*s}], v7, s[24:27], s37 offen offset:{s*32}{SL}")
    for t in range(8):
        a(f"s_cmp_eq_u32 s3, {t}")
        a(f"s_cselect_b32 s58, s{40+t}, s58")
    a(f"""
    s_lshl_b32 s59, s58, 10
    buffer_load_dwordx4 v[24:27], v4, s[24:27], s59 offen{SL}      ; h2 row
    buffer_load_dwordx4 v[28:31], v4, s[32:35], s59 offen{SL}      ; x2 row
    s_lshl_b32 s37, s58, 2
    v_mov_b32 v45, 0
    buffer_load_dword v32, v45, s[60:63], s37 offen{SL}             ; r
    s_waitcnt vmcnt(3)
    """)
    for s in range(8):
        a(f"ds_read_b64_tr_b16 v[{96+4*s}:{97+4*s}], v5 offset:{s*1024}")
        a(f"ds_read_b64_tr_b16 v[{98+4*s}:{99+4*s}], v5 offset:{s*1024+256}")
    for s in range(8):
        a(f"s_waitcnt lgkmcnt({2*(7-s)})")
        c = "0" if s == 0 else "v[8:23]"
        a(f"v_mfma_f32_32x32x16_bf16 v[8:23], v[{96+4*s}:{99+4*s}], v[{64+4*s}:{67+4*s}], {c}")
    a(f"""
    v_and_b32 v44, 31, v1
    v_lshlrev_b32 v45, 7, v44
    v_lshrrev_b32 v46, 5, v1
    v_lshlrev_b32 v46, 4, v46
    v_add_u32 v45, v45, v46
    s_lshl_b32 s37, s3, 10
    s_add_u32 s37, s37, {RED}
    v_add_u32 v45, s37, v45
    v_cmp_gt_u32 vcc, 8, v44
    s_nop 7
    s_nop 3
    s_and_saveexec_b64 s[56:57], vcc
    """)
    for q in range(4):
        a(f"ds_write_b128 v45, v[{8+4*q}:{11+4*q}] offset:{q*32}")
    a(f"""
    s_mov_b64 exec, -1
    s_waitcnt lgkmcnt(0)
    s_barrier
    s_cmp_ge_u32 s3, 4
    s_cbranch_scc1 Lk5_noact
    v_lshlrev_b32 v44, 2, v0
    v_add_u32 v44, {RED}, v44
    """)
    for w in range(8):
        a(f"ds_read_b32 v{8+w}, v44 offset:{w*1024}")
    a("""
    s_waitcnt lgkmcnt(0)
    v_add_f32 v8, v8, v9
    v_add_f32 v10, v10, v11
    v_add_f32 v8, v8, v10
    v_add_f32 v12, v12, v13
    v_add_f32 v14, v14, v15
    v_add_f32 v12, v12, v14
    """)
    round_bf16(a, 8, 8)
    round_bf16(a, 12, 12)
    a(f"""
    s_mov_b32 s36, {LOG2E:#x}
    v_mul_f32 v9, s36, v8
    v_exp_f32 v9, -v9
    s_nop 0
    v_add_f32 v9, 1.0, v9
    v_rcp_f32 v9, v9
    s_nop 0
    v_mul_f32 v8, v8, v9
    """)
    round_bf16(a, 8, 8)
    a(f"""
    v_mul_f32 v8, v8, v12
    v_cvt_pk_bf16_f32 v8, v8, v8
    v_lshlrev_b32 v44, 1, v0
    v_add_u32 v44, {ACTL}, v44
    ds_write_b16 v44, v8
    """)
    a.label("Lk5_noact")
    a("""
    s_waitcnt lgkmcnt(0)
    s_barrier
    ds_read_b128 v[64:67], v53
    ds_read_b128 v[68:71], v53 offset:32
    """)
    for x in range(2):
        for s in range(2):
            b = 72 + 8 * x + 4 * s
            a(f"ds_read_b64_tr_b16 v[{b}:{b+1}], v{51+x} offset:{s*16384}")
            a(f"ds_read_b64_tr_b16 v[{b+2}:{b+3}], v{51+x} offset:{s*16384+4096}")
    a("s_waitcnt lgkmcnt(0)")
    for x in range(2):
        d = 96 + 16 * x
        a(f"v_mfma_f32_32x32x16_bf16 v[{d}:{d+15}], v[64:67], v[{72+8*x}:{75+8*x}], 0")
        a(f"v_mfma_f32_32x32x16_bf16 v[{d}:{d+15}], v[68:71], v[{76+8*x}:{79+8*x}], v[{d}:{d+15}]")
    a("""
    s_lshl_b32 s37, s3, 8
    s_add_u32 s39, s37, 4096
    s_nop 15
    """)
    for x in range(2):
        for i in range(4):
            a(f"buffer_atomic_add_f32 v{96+16*x+i}, v54, s[28:31], s{37 if i < 2 else 39} offen offset:{x*128 + (i & 1)*2048}")
    a(f"""
    s_waitcnt vmcnt(0)
    s_barrier
    s_cmp_lg_u32 s3, 0
    s_cbranch_scc1 Lk5_wait
    v_mov_b32 v44, 1
    v_mov_b32 v45, 0
    s_mov_b64 exec, 1
    buffer_atomic_add v44, v45, s[72:75], 0 offen sc0 sc1
    s_waitcnt vmcnt(0)
    v_mov_b32 v45, {FLG}
    ds_write_b32 v45, v44
    s_mov_b64 exec, -1
    s_waitcnt lgkmcnt(0)
    """)
    a.label("Lk5_wait")
    a(f"""
    s_barrier
    v_mov_b32 v45, {FLG}
    ds_read_b32 v44, v45
    s_waitcnt lgkmcnt(0)
    s_nop 0
    v_readfirstlane_b32 s36, v44
    s_nop 3
    s_cmp_lg_u32 s36, 55
    s_cbranch_scc1 Lk5_end
    s_lshl_b32 s37, s3, 11
    """)
    for j in range(8):
        a(f"v_mov_b32 v{8+j}, 0")
    for j in range(8):
        a(f"buffer_atomic_add_f32 v{8+j}, v55, s[28:31], s37 offen offset:{4*j} sc0")
    a(f"""
    s_mov_b32 s37, {LOG2E:#x}
    v_mul_f32 v32, s37, v32
    v_exp_f32 v32, -v32
    s_nop 0
    v_add_f32 v32, 1.0, v32
    v_rcp_f32 v32, v32
    s_nop 0
    """)
    round_bf16(a, 32, 32)
    for j in range(4):
        unpack_bf16(a, 64 + 2 * j, 65 + 2 * j, 24 + j)
        unpack_bf16(a, 72 + 2 * j, 73 + 2 * j, 28 + j)
    a("s_waitcnt vmcnt(0)")
    for j in range(8):
        round_bf16(a, 8 + j, 8 + j)
        a(f"v_mul_f32 v{8+j}, v{8+j}, v32")
        round_bf16(a, 8 + j, 8 + j)
        a(f"v_add_f32 v{8+j}, v{8+j}, v{64+j}")
        round_bf16(a, 8 + j, 8 + j)
        a(f"v_mul_f32 v{8+j}, v{8+j}, v{56+j}")
        round_bf16(a, 8 + j, 8 + j)
        a(f"v_add_f32 v{8+j}, v{8+j}, v{72+j}")
    for j in range(4):
        a(f"v_cvt_pk_bf16_f32 v{80+j}, v{8+2*j}, v{9+2*j}")
    a(f"buffer_store_dwordx4 v[80:83], v4, s[68:71], s59 offen{SC}")
    a.label("Lk5_end")
    a("s_endpgm")
    return kernel_desc("pm_kernel", 128, sgpr=88)
```

```python
from genlib import *
from gen_small import *

def gen_prep2(a):
    import os
    kernel_begin(a, "prep_kernel")
    a(f"""
    s_cmp_ge_u32 s2, 256
    s_cbranch_scc1 Lk0_end
    s_cmp_ge_u32 s2, 176
    s_cbranch_scc1 Lk0_end
    s_load_dwordx2 s[4:5], s[0:1], 80
    s_load_dwordx2 s[6:7], s[0:1], 88
    s_load_dwordx2 s[8:9], s[0:1], 112
    s_load_dwordx2 s[10:11], s[0:1], 0
    s_load_dwordx2 s[30:31], s[0:1], 104
    s_cmp_ge_u32 s2, 48
    s_cbranch_scc1 Lk0_h1
    v_and_b32 v1, 7, v0
    v_lshrrev_b32 v2, 3, v0
    v_lshlrev_b32 v3, 5, v2
    s_mov_b32 s24, 98304
    v_mul_lo_u32 v28, v2, s24
    v_lshlrev_b32 v29, 4, v1
    v_add_u32 v28, v28, v29
    s_lshl_b32 s25, s2, 7
    s_waitcnt lgkmcnt(0)
    """)
    srd(a, 12, 4, 1024)
    srd(a, 16, 6, 512 * 3072 * 2)
    srd(a, 20, 8, 3072 * 4, WS_MOD)
    srd(a, 32, 30, 256)
    a("buffer_load_dwordx4 v[4:7], v3, s[12:15], 0 offen")
    a("buffer_load_dwordx4 v[8:11], v3, s[12:15], 0 offen offset:16")
    for kk in range(16):
        a(f"buffer_load_dwordx4 v[{32+4*kk}:{35+4*kk}], v28, s[16:19], s25 offen")
        if kk < 15:
            a("s_add_u32 s25, s25, 6144")
    a("s_waitcnt vmcnt(16)")
    for j in range(8):
        unpack_bf16(a, 12 + 2 * j, 13 + 2 * j, 4 + j)
    a(f"s_mov_b32 s26, {LOG2E:#x}")
    for k in range(16):
        v = 12 + k
        a(f"v_mul_f32 v30, s26, v{v}")
        a(f"v_exp_f32 v30, -v30")
        a("s_nop 0")
        a(f"v_add_f32 v30, 1.0, v30")
        a(f"v_rcp_f32 v30, v30")
        a("s_nop 0")
        a(f"v_mul_f32 v{v}, v{v}, v30")
        round_bf16(a, v, v)
    for j in range(8):
        a(f"v_mov_b32 v{96+j}, 0")
    for kk in range(16):
        a(f"s_waitcnt vmcnt({15-kk})")
        for j in range(4):
            unpack_bf16(a, 30, 31, 32 + 4 * kk + j)
            a(f"v_fmac_f32 v{96+2*j}, v{12+kk}, v30")
            a(f"v_fmac_f32 v{97+2*j}, v{12+kk}, v31")
    a("""
    v_lshlrev_b32 v3, 8, v2
    v_lshlrev_b32 v29, 5, v1
    v_add_u32 v3, v3, v29
    ds_write_b128 v3, v[96:99]
    ds_write_b128 v3, v[100:103] offset:16
    s_waitcnt lgkmcnt(0)
    s_barrier
    v_cmp_gt_u32 vcc, 64, v0
    s_and_saveexec_b64 s[28:29], vcc
    s_cbranch_execz Lk0_end
    v_lshlrev_b32 v3, 2, v0
    """)
    for ks in range(32):
        a(f"ds_read_b32 v{32+ks}, v3 offset:{ks*256}")
    a("s_waitcnt lgkmcnt(0)")
    for ks in range(1, 32):
        a(f"v_add_f32 v32, v32, v{32+ks}")
    round_bf16(a, 32, 32)
    a("""
    s_lshl_b32 s25, s2, 8
    buffer_store_dword v32, v3, s[20:23], s25 offen sc0 sc1
    s_cmp_ge_u32 s2, 16
    s_cbranch_scc1 Lk0_end
    s_waitcnt vmcnt(0)
    v_mov_b32 v4, 1
    v_mov_b32 v5, 64
    s_mov_b64 exec, 1
    buffer_atomic_add v4, v5, s[32:35], 0 offen sc0 sc1
    s_waitcnt vmcnt(0)
    v_readfirstlane_b32 s24, v4
    s_nop 3
    s_cmp_lg_u32 s24, 15
    s_cbranch_scc1 Lk0_end
    v_mov_b32 v4, 16
    v_mov_b32 v5, 128
    buffer_store_dword v4, v5, s[32:35], 0 offen sc0 sc1
    s_branch Lk0_end
    """)
    a.label("Lk0_h1")
    a("""
    v_and_b32 v1, 63, v0
    v_lshrrev_b32 v2, 6, v0
    s_sub_u32 s24, s2, 48
    s_lshl_b32 s24, s24, 2
    v_add_u32 v2, s24, v2
    v_lshlrev_b32 v2, 2, v2
    v_lshlrev_b32 v3, 10, v2
    v_lshlrev_b32 v4, 4, v1
    v_add_u32 v3, v3, v4
    v_lshlrev_b32 v5, 5, v1
    s_waitcnt lgkmcnt(0)
    """)
    srd(a, 12, 10, 2048 * 512 * 2)
    srd(a, 16, 8, 3072 * 4, WS_MOD)
    srd(a, 20, 8, 2048 * 512 * 2, WS_H1F)
    srd(a, 32, 30, 256)
    for r in range(4):
        a(f"buffer_load_dwordx4 v[{8+4*r}:{11+4*r}], v3, s[12:15], 0 offen offset:{r*1024}")
    a("""
    v_lshrrev_b32 v6, 5, v2
    v_lshlrev_b32 v6, 15, v6
    v_lshrrev_b32 v7, 1, v1
    v_lshlrev_b32 v7, 10, v7
    v_add_u32 v6, v6, v7
    v_and_b32 v7, 31, v2
    v_lshlrev_b32 v7, 4, v7
    v_add_u32 v6, v6, v7
    v_and_b32 v7, 1, v1
    v_lshlrev_b32 v7, 9, v7
    v_add_u32 v6, v6, v7
    s_waitcnt vmcnt(0)
    """)
    for r in range(4):
        x0 = 32
        for j in range(4):
            unpack_bf16(a, x0 + 2 * j, x0 + 1 + 2 * j, 8 + 4 * r + j)
        t0, t1, t2, t3 = 24, 25, 26, 27
        a(f"v_add_f32 v{t0}, v{x0}, v{x0+1}")
        for j in range(2, 8):
            a(f"v_add_f32 v{t0}, v{t0}, v{x0+j}")
        wave_allreduce(a, t0, t1, t2)
        a(f"v_mul_f32 v{t0}, 0x3b000000, v{t0}")
        a(f"v_sub_f32 v{t1}, v{x0}, v{t0}")
        a(f"v_mul_f32 v{t3}, v{t1}, v{t1}")
        for j in range(1, 8):
            a(f"v_sub_f32 v{t1}, v{x0+j}, v{t0}")
            a(f"v_fmac_f32 v{t3}, v{t1}, v{t1}")
        wave_allreduce(a, t3, t1, t2)
        a(f"v_mul_f32 v{t3}, 0x3b000000, v{t3}")
        round_bf16(a, t0, t0)
        round_bf16(a, t3, t3)
        a(f"v_add_f32 v{t3}, 0x3727c5ac, v{t3}")
        round_bf16(a, t3, t3)
        a(f"v_sqrt_f32 v{t3}, v{t3}")
        a("s_nop 0")
        round_bf16(a, t3, t3)
        a(f"v_rcp_f32 v{t3}, v{t3}")
        a("s_nop 0")
        for j in range(8):
            o = 64 + 8 * r + j
            a(f"v_sub_f32 v{o}, v{x0+j}, v{t0}")
            round_bf16(a, o, o)
            a(f"v_mul_f32 v{o}, v{o}, v{t3}")
            round_bf16(a, o, o)
    a("""
    v_mov_b32 v28, 128
    v_lshrrev_b32 v29, 6, v0
    s_nop 0
    v_readfirstlane_b32 s24, v29
    s_nop 3
    s_cmp_lg_u32 s24, 0
    s_cbranch_scc1 Lk0_go
    """)
    a.label("Lk0_poll")
    a("""
    buffer_load_dword v29, v28, s[32:35], 0 offen sc0 sc1
    s_waitcnt vmcnt(0)
    v_readfirstlane_b32 s24, v29
    s_nop 3
    s_cmp_ge_u32 s24, 16
    s_cbranch_scc1 Lk0_go
    s_sleep 2
    s_branch Lk0_poll
    """)
    a.label("Lk0_go")
    a("""
    s_barrier
    buffer_load_dwordx4 v[40:43], v5, s[16:19], 0 offen sc1
    buffer_load_dwordx4 v[44:47], v5, s[16:19], 0 offen offset:16 sc1
    buffer_load_dwordx4 v[48:51], v5, s[16:19], 0 offen offset:2048 sc1
    buffer_load_dwordx4 v[52:55], v5, s[16:19], 0 offen offset:2064 sc1
    s_waitcnt vmcnt(0)
    """)
    for j in range(8):
        a(f"v_add_f32 v{48+j}, 1.0, v{48+j}")
        round_bf16(a, 48 + j, 48 + j)
    for r in range(4):
        for j in range(8):
            o = 64 + 8 * r + j
            a(f"v_mul_f32 v{o}, v{o}, v{48+j}")
            round_bf16(a, o, o)
            a(f"v_add_f32 v{o}, v{o}, v{40+j}")
        for j in range(4):
            a(f"v_cvt_pk_bf16_f32 v{8+4*r+j}, v{64+8*r+2*j}, v{65+8*r+2*j}")
        a(f"buffer_store_dwordx4 v[{8+4*r}:{11+4*r}], v6, s[20:23], 0 offen offset:{16*r}")
    a("s_branch Lk0_end")
    a.label("Lk0_pf")
    a("""
    s_load_dwordx2 s[4:5], s[0:1], 32     ; wo
    s_load_dwordx2 s[6:7], s[0:1], 56     ; gate
    s_load_dwordx2 s[8:9], s[0:1], 64     ; up
    s_load_dwordx2 s[10:11], s[0:1], 72   ; down
    s_load_dwordx2 s[28:29], s[0:1], 24   ; wq
    v_lshrrev_b32 v1, 6, v0
    s_nop 0
    v_readfirstlane_b32 s24, v1
    v_and_b32 v1, 63, v0
    v_lshlrev_b32 v1, 7, v1
    s_sub_u32 s25, s2, 176
    s_lshl_b32 s25, s25, 2
    s_add_u32 s24, s24, s25               ; gw 0..319
    s_waitcnt lgkmcnt(0)
    """)
    srd(a, 12, 28, 4194304)
    srd(a, 16, 4, 4194304)
    srd(a, 20, 6, 1835008)
    srd(a, 32, 8, 1835008)
    srd(a, 36, 10, 1835008)
    a("s_lshl_b32 s25, s24, 14")
    a("s_lshl_b32 s26, s24, 13")
    a("buffer_load_dword v2, v1, s[12:15], s25 offen")
    a("s_add_u32 s25, s25, 8192")
    a("buffer_load_dword v3, v1, s[12:15], s25 offen")
    a.label("Lk0_end")
    a("s_endpgm")
    return kernel_desc("prep_kernel", 104, sgpr=64)
```

```python
from genlib import *
from gen_small import *
from gen_moe import *
from gen_moe2 import WS_Y
import os
RPW = int(os.environ.get('RPW', '1'))
NPOST = 128

def gen_postmoe(a):
    WD = 65536; RED = 98304; ACTL = 106496; FLG = 107008
    SC = " sc1"
    SL = " sc1"
    kernel_begin(a, "pm_kernel")
    a(f"""
    s_cmp_ge_u32 s2, {56 + NPOST}
    s_cbranch_scc1 Lk5_end
    s_load_dwordx2 s[4:5], s[0:1], 56     ; w_gate
    s_load_dwordx2 s[6:7], s[0:1], 64     ; w_up
    s_load_dwordx2 s[8:9], s[0:1], 112    ; ws
    s_load_dwordx2 s[10:11], s[0:1], 72   ; w_down
    s_load_dwordx2 s[64:65], s[0:1], 96   ; out
    s_load_dwordx2 s[66:67], s[0:1], 104  ; debug
    s_load_dwordx2 s[80:81], s[0:1], 0    ; x
    s_load_dwordx2 s[82:83], s[0:1], 48   ; w_r
    v_and_b32 v1, 63, v0
    v_lshrrev_b32 v2, 6, v0
    s_nop 0
    v_readfirstlane_b32 s3, v2            ; wave
    v_lshlrev_b32 v4, 4, v1               ; lane*16
    s_waitcnt lgkmcnt(0)
    """)
    srd(a, 20, 8, 2048 * 4, WS_KEY)
    srd(a, 24, 8, 2048 * 512 * 2, WS_H2)
    srd(a, 32, 8, 2048 * 512 * 2, WS_X2)
    srd(a, 60, 8, 2048 * 4, WS_R)
    srd(a, 68, 64, 2048 * 512 * 2)
    srd(a, 72, 66, 256)
    srd(a, 76, 8, 3072 * 4, WS_MOD)
    a("""
    s_cmp_lt_u32 s2, 56
    s_cbranch_scc1 Lk5_moe
    """)
    srd(a, 12, 80, 2048 * 512 * 2)
    srd(a, 16, 8, 2 * 2048 * 512 * 4, WS_PART)
    srd(a, 28, 82, 1024)
    a("""
    s_sub_u32 s36, s2, 56
    s_lshl_b32 s36, s36, 4
    s_add_u32 s36, s36, s3
    s_mul_i32 s36, s36, RPWX              ; first row of wave
    s_lshl_b32 s37, s36, 10               ; bf16 row byte offset
    s_lshl_b32 s38, s36, 11               ; fp32 row byte offset
    v_lshlrev_b32 v5, 5, v1               ; lane*32
    """.replace("RPWX", str(RPW)))
    for r in range(RPW):
        a(f"s_add_u32 s39, s38, {r*2048}")
        for p in range(2):
            b = 64 + 32 * r + 8 * p
            a(f"buffer_load_dwordx4 v[{b}:{b+3}], v5, s[16:19], s39 offen")
            a(f"buffer_load_dwordx4 v[{b+4}:{b+7}], v5, s[16:19], s39 offen offset:16")
            if p < 1: a("s_add_u32 s39, s39, 0x400000")
    a("""
    buffer_load_dwordx4 v[8:11], v4, s[12:15], s37 offen
    buffer_load_dwordx4 v[96:99], v4, s[28:31], 0 offen              ; w_r
    s_mov_b32 s39, 4096
    buffer_load_dwordx4 v[100:103], v5, s[76:79], s39 offen            ; ga
    buffer_load_dwordx4 v[104:107], v5, s[76:79], s39 offen offset:16
    buffer_load_dwordx4 v[16:19], v5, s[76:79], s39 offen offset:2048  ; sb
    buffer_load_dwordx4 v[20:23], v5, s[76:79], s39 offen offset:2064
    s_mov_b32 s39, 8192
    buffer_load_dwordx4 v[24:27], v5, s[76:79], s39 offen              ; cb
    buffer_load_dwordx4 v[28:31], v5, s[76:79], s39 offen offset:16
    buffer_load_dwordx4 v[108:111], v5, s[76:79], s39 offen offset:2048 ; gb
    buffer_load_dwordx4 v[112:115], v5, s[76:79], s39 offen offset:2064
    s_waitcnt vmcnt(0)
    """)
    for j in range(4):
        unpack_bf16(a, 116 + 2 * j, 117 + 2 * j, 96 + j)
    for r in range(RPW):
        xs = 8 if r == 0 else 128
        pb = 64 + 32 * r
        for j in range(4):
            unpack_bf16(a, 32 + 2 * j, 33 + 2 * j, xs + j)
        for j in range(8):
            a(f"v_add_f32 v{pb+j}, v{pb+j}, v{pb+8+j}")
            round_bf16(a, pb + j, pb + j)
            a(f"v_mul_f32 v{pb+j}, v{pb+j}, v{100+j}")
            round_bf16(a, pb + j, pb + j)
            a(f"v_add_f32 v{32+j}, v{32+j}, v{pb+j}")
            round_bf16(a, 32 + j, 32 + j)
        ln_mod(a, 32, 12, 24, 16, 40)
        a("v_mul_f32 v56, v40, v116")
        for j in range(1, 8):
            a(f"v_fmac_f32 v56, v{40+j}, v{116+j}")
        wave_allreduce(a, 56, 57, 58)
        round_bf16(a, 56, 56)
        for j in range(4):
            a(f"v_cvt_pk_bf16_f32 v{48+j}, v{40+2*j}, v{41+2*j}")
            a(f"v_cvt_pk_bf16_f32 v{52+j}, v{32+2*j}, v{33+2*j}")
        a(f"buffer_store_dwordx4 v[48:51], v4, s[24:27], s37 offen offset:{r*1024}{SC}")
        a(f"buffer_store_dwordx4 v[52:55], v4, s[32:35], s37 offen offset:{r*1024}{SC}")
        for j in range(8):
            a(f"v_mul_f32 v{pb+j}, v{40+j}, v{108+j}")
            round_bf16(a, pb + j, pb + j)
            a(f"v_add_f32 v{pb+j}, v{pb+j}, v{32+j}")
        for j in range(4):
            a(f"v_cvt_pk_bf16_f32 v{60+j}, v{pb+2*j}, v{pb+1+2*j}")
        a(f"buffer_store_dwordx4 v[60:63], v4, s[68:71], s37 offen offset:{r*1024}{SC}")
        a(f"""
        v_ashrrev_i32 v57, 31, v56
        v_or_b32 v57, 0x80000000, v57
        v_xor_b32 v57, v57, v56
        v_and_b32 v57, 0xffff0000, v57
        s_add_u32 s39, s36, {r}
        s_sub_u32 s40, 2047, s39
        v_or_b32 v57, s40, v57
        s_lshl_b32 s39, s39, 2
        v_mov_b32 v58, 0
        s_mov_b64 exec, 1
        buffer_store_dword v56, v58, s[60:63], s39 offen{SC}
        buffer_store_dword v57, v58, s[20:23], s39 offen{SC}
        s_mov_b64 exec, -1
        """)
    a(f"""
    s_waitcnt vmcnt(0)
    s_barrier
    s_cmp_lg_u32 s3, 0
    s_cbranch_scc1 Lk5_end
    v_mov_b32 v44, 1
    v_mov_b32 v45, 64
    s_mov_b64 exec, 1
    buffer_atomic_add v44, v45, s[72:75], 0 offen sc0 sc1
    s_waitcnt vmcnt(0)
    v_readfirstlane_b32 s36, v44
    s_nop 3
    s_cmp_lg_u32 s36, {NPOST - 1}
    s_cbranch_scc1 Lk5_end
    v_mov_b32 v44, {NPOST}
    v_mov_b32 v45, 128
    buffer_store_dword v44, v45, s[72:75], 0 offen sc0 sc1
    s_branch Lk5_end
    """)
    a.label("Lk5_moe")
    a("s_cmp_ge_u32 s3, 8")
    a("s_cbranch_scc1 Lk5_end")
    a("""
    v_lshrrev_b32 v3, 2, v1
    s_mov_b32 s36, 3584
    v_mul_lo_u32 v3, v3, s36
    v_and_b32 v44, 3, v1
    v_lshlrev_b32 v44, 4, v44
    v_add_u32 v3, v3, v44
    s_lshr_b32 s36, s3, 2
    s_cmp_eq_u32 s36, 0
    s_cselect_b32 s12, s4, s6
    s_cselect_b32 s13, s5, s7
    s_mov_b32 s14, 0x1c0000
    s_mov_b32 s15, 0x00020000
    """)
    srd(a, 16, 10, 1792 * 512 * 2)
    srd(a, 28, 8, 8 * 512 * 4, WS_Y)
    a("""
    s_and_b32 s36, s3, 3
    s_mul_i32 s37, s36, 458752            ; 128 rows * 3584
    s_lshl_b32 s38, s2, 6
    s_add_u32 s37, s37, s38
    s_lshl_b32 s38, s3, 13
    """)
    for c in range(8):
        a(f"s_add_u32 m0, s38, {c*1024}")
        a("s_nop 0")
        a("buffer_load_dwordx4 v3, s[12:15], s37 offen lds")
        if c < 7: a("s_add_u32 s37, s37, 57344")
    a("""
    s_lshl_b32 s37, s2, 15
    s_lshl_b32 s39, s3, 12
    s_add_u32 s37, s37, s39
    """)
    for i in range(4):
        a(f"v_xor_b32 v44, {i << 6}, v4")
        a(f"s_add_u32 m0, s39, {WD + i*1024}")
        a("s_nop 0")
        a("buffer_load_dwordx4 v44, s[16:19], s37 offen lds")
        if i < 3: a("s_add_u32 s37, s37, 1024")
    tr_addr64(a, 5, 1, 6, 7)
    a("v_add_u32 v5, s38, v5")
    a("v_and_b32 v6, 7, v1")
    a(f"""
    v_lshrrev_b32 v47, 5, v1             ; u
    v_and_b32 v48, 15, v1
    v_lshrrev_b32 v48, 2, v48           ; r
    v_lshlrev_b32 v49, 3, v47
    v_add_u32 v49, v49, v48
    v_lshlrev_b32 v49, 10, v49
    v_lshrrev_b32 v50, 4, v1
    v_and_b32 v50, 1, v50
    v_lshlrev_b32 v50, 5, v50
    v_add_u32 v49, v49, v50
    v_and_b32 v50, 3, v1
    v_lshlrev_b32 v50, 3, v50
    v_add_u32 v49, v49, v50
    s_lshr_b32 s37, s3, 1
    s_lshl_b32 s37, s37, 8
    s_add_u32 s37, s37, {WD}
    v_add_u32 v49, s37, v49
    s_and_b32 s37, s3, 1
    s_lshl_b32 s37, s37, 1
    v_xor_b32 v50, s37, v48
    v_lshlrev_b32 v50, 6, v50
    v_add_u32 v51, v49, v50
    s_add_u32 s37, s37, 1
    v_xor_b32 v50, s37, v48
    v_lshlrev_b32 v50, 6, v50
    v_add_u32 v52, v49, v50
    v_lshlrev_b32 v53, 6, v6
    v_lshlrev_b32 v50, 4, v47
    v_add_u32 v53, v53, v50
    v_add_u32 v53, {ACTL}, v53
    v_and_b32 v54, 31, v1
    v_lshlrev_b32 v54, 2, v54
    v_lshlrev_b32 v50, 13, v47
    v_add_u32 v54, v54, v50            ; y voffset
    v_lshlrev_b32 v55, 5, v1             ; lane*32
    s_mov_b32 s37, 10240
    buffer_load_dwordx4 v[56:59], v55, s[76:79], s37 offen
    buffer_load_dwordx4 v[60:63], v55, s[76:79], s37 offen offset:16
    v_mov_b32 v45, 128
    """)
    a("""
    s_cmp_lg_u32 s3, 0
    s_cbranch_scc1 Lk5_go2
    """)
    a.label("Lk5_poll")
    a(f"""
    buffer_load_dword v44, v45, s[72:75], 0 offen sc0 sc1
    s_waitcnt vmcnt(0)
    v_readfirstlane_b32 s37, v44
    s_nop 3
    s_cmp_ge_u32 s37, {NPOST}
    s_cbranch_scc1 Lk5_go
    s_sleep 3
    s_branch Lk5_poll
    """)
    a.label("Lk5_go")
    if 'st5' in os.environ.get('XF', ''): a("s_memrealtime s[84:85]")
    K = 8; T = 40; T1 = 41; T2 = 42
    a(f"v_lshlrev_b32 v{T}, 7, v1")
    for i in range(8):
        a(f"buffer_load_dwordx4 v[{K+4*i}:{K+4*i+3}], v{T}, s[20:23], 0 offen offset:{16*i}{SL}")
    a("s_waitcnt vmcnt(0)")
    if 'st5' in os.environ.get('XF', ''): a("s_memrealtime s[86:87]")
    top8k_compute(a, K, T, T1, T2, 40, 48)
    if 'st5' in os.environ.get('XF', ''): a("s_memrealtime s[88:89]")
    for t in range(8):
        a(f"v_mov_b32 v{8+t}, s{40+t}")
    a(f"""
    v_mov_b32 v45, {FLG + 64}
    ds_write_b128 v45, v[8:11]
    ds_write_b128 v45, v[12:15] offset:16
    s_waitcnt lgkmcnt(0)
    """)
    a.label("Lk5_go2")
    a(f"""
    s_barrier
    v_mov_b32 v45, {FLG + 64}
    ds_read_b128 v[8:11], v45
    ds_read_b128 v[12:15], v45 offset:16
    s_waitcnt lgkmcnt(0)
    """)
    for t in range(8):
        a(f"v_readfirstlane_b32 s{40+t}, v{8+t}")
    a("s_nop 3")
    sel8(a, 7, 6, 44, 40)
    a("""
    v_lshlrev_b32 v7, 10, v7
    v_lshrrev_b32 v44, 5, v1
    v_lshlrev_b32 v44, 4, v44
    v_add_u32 v7, v7, v44
    s_lshl_b32 s37, s36, 8
    """)
    for s in range(8):
        a(f"buffer_load_dwordx4 v[{64+4*s}:{67+4*s}], v7, s[24:27], s37 offen offset:{s*32}{SL}")
    for t in range(8):
        a(f"s_cmp_eq_u32 s3, {t}")
        a(f"s_cselect_b32 s58, s{40+t}, s58")
    a(f"""
    s_lshl_b32 s59, s58, 10
    buffer_load_dwordx4 v[24:27], v4, s[24:27], s59 offen{SL}      ; h2 row
    buffer_load_dwordx4 v[28:31], v4, s[32:35], s59 offen{SL}      ; x2 row
    s_lshl_b32 s37, s58, 2
    v_mov_b32 v45, 0
    buffer_load_dword v32, v45, s[60:63], s37 offen{SL}             ; r
    s_waitcnt vmcnt(3)
    """)
    if 'st5' in os.environ.get('XF', ''): a("s_memrealtime s[90:91]")
    for s in range(8):
        a(f"ds_read_b64_tr_b16 v[{96+4*s}:{97+4*s}], v5 offset:{s*1024}")
        a(f"ds_read_b64_tr_b16 v[{98+4*s}:{99+4*s}], v5 offset:{s*1024+256}")
    for s in range(8):
        a(f"s_waitcnt lgkmcnt({2*(7-s)})")
        c = "0" if s == 0 else "v[8:23]"
        a(f"v_mfma_f32_32x32x16_bf16 v[8:23], v[{96+4*s}:{99+4*s}], v[{64+4*s}:{67+4*s}], {c}")
    a(f"""
    v_and_b32 v44, 31, v1
    v_lshlrev_b32 v45, 7, v44
    v_lshrrev_b32 v46, 5, v1
    v_lshlrev_b32 v46, 4, v46
    v_add_u32 v45, v45, v46
    s_lshl_b32 s37, s3, 10
    s_add_u32 s37, s37, {RED}
    v_add_u32 v45, s37, v45
    v_cmp_gt_u32 vcc, 8, v44
    s_nop 7
    s_nop 3
    s_and_saveexec_b64 s[56:57], vcc
    """)
    for q in range(4):
        a(f"ds_write_b128 v45, v[{8+4*q}:{11+4*q}] offset:{q*32}")
    a(f"""
    s_mov_b64 exec, -1
    s_waitcnt lgkmcnt(0)
    s_barrier
    s_cmp_ge_u32 s3, 4
    s_cbranch_scc1 Lk5_noact
    v_lshlrev_b32 v44, 2, v0
    v_add_u32 v44, {RED}, v44
    """)
    for w in range(8):
        a(f"ds_read_b32 v{8+w}, v44 offset:{w*1024}")
    a("""
    s_waitcnt lgkmcnt(0)
    v_add_f32 v8, v8, v9
    v_add_f32 v10, v10, v11
    v_add_f32 v8, v8, v10
    v_add_f32 v12, v12, v13
    v_add_f32 v14, v14, v15
    v_add_f32 v12, v12, v14
    """)
    round_bf16(a, 8, 8)
    round_bf16(a, 12, 12)
    a(f"""
    s_mov_b32 s36, {LOG2E:#x}
    v_mul_f32 v9, s36, v8
    v_exp_f32 v9, -v9
    s_nop 0
    v_add_f32 v9, 1.0, v9
    v_rcp_f32 v9, v9
    s_nop 0
    v_mul_f32 v8, v8, v9
    """)
    round_bf16(a, 8, 8)
    a(f"""
    v_mul_f32 v8, v8, v12
    v_cvt_pk_bf16_f32 v8, v8, v8
    v_lshlrev_b32 v44, 1, v0
    v_add_u32 v44, {ACTL}, v44
    ds_write_b16 v44, v8
    """)
    a.label("Lk5_noact")
    if 'st5' in os.environ.get('XF', ''): a("s_memrealtime s[92:93]")
    a("""
    s_waitcnt lgkmcnt(0)
    s_barrier
    ds_read_b128 v[64:67], v53
    ds_read_b128 v[68:71], v53 offset:32
    """)
    for x in range(2):
        for s in range(2):
            b = 72 + 8 * x + 4 * s
            a(f"ds_read_b64_tr_b16 v[{b}:{b+1}], v{51+x} offset:{s*16384}")
            a(f"ds_read_b64_tr_b16 v[{b+2}:{b+3}], v{51+x} offset:{s*16384+4096}")
    a("s_waitcnt lgkmcnt(0)")
    for x in range(2):
        d = 96 + 16 * x
        a(f"v_mfma_f32_32x32x16_bf16 v[{d}:{d+15}], v[64:67], v[{72+8*x}:{75+8*x}], 0")
        a(f"v_mfma_f32_32x32x16_bf16 v[{d}:{d+15}], v[68:71], v[{76+8*x}:{79+8*x}], v[{d}:{d+15}]")
    a("""
    s_lshl_b32 s37, s3, 8
    s_add_u32 s39, s37, 4096
    s_nop 15
    """)
    for x in range(2):
        for i in range(4):
            a(f"buffer_atomic_add_f32 v{96+16*x+i}, v54, s[28:31], s{37 if i < 2 else 39} offen offset:{x*128 + (i & 1)*2048}")
    a("s_waitcnt vmcnt(0)")
    if 'st5' in os.environ.get('XF', ''): a("s_memrealtime s[94:95]")
    a(f"""
    s_barrier
    s_cmp_lg_u32 s3, 0
    s_cbranch_scc1 Lk5_wait
    v_mov_b32 v44, 1
    v_mov_b32 v45, 0
    s_mov_b64 exec, 1
    buffer_atomic_add v44, v45, s[72:75], 0 offen sc0 sc1
    s_waitcnt vmcnt(0)
    v_mov_b32 v45, {FLG}
    ds_write_b32 v45, v44
    s_mov_b64 exec, -1
    s_waitcnt lgkmcnt(0)
    """)
    if 'st5' in os.environ.get('XF', ''): a("s_memrealtime s[96:97]")
    if 'st5' in os.environ.get('XF', ''):
        a("s_waitcnt lgkmcnt(0)")
        srd(a, 4, 8, 1 << 20, 82 << 20)
        for i in range(14): a(f"v_mov_b32 v{100+i}, s{84+i}")
        a("""
        s_lshl_b32 s36, s2, 6
        v_mov_b32 v99, 0
        s_mov_b64 exec, 1
        buffer_store_dwordx4 v[100:103], v99, s[4:7], s36 offen
        buffer_store_dwordx4 v[104:107], v99, s[4:7], s36 offen offset:16
        buffer_store_dwordx4 v[108:111], v99, s[4:7], s36 offen offset:32
        buffer_store_dwordx2 v[112:113], v99, s[4:7], s36 offen offset:48
        s_mov_b64 exec, -1
        """)
    a.label("Lk5_wait")
    a(f"""
    s_barrier
    v_mov_b32 v45, {FLG}
    ds_read_b32 v44, v45
    s_waitcnt lgkmcnt(0)
    s_nop 0
    v_readfirstlane_b32 s36, v44
    s_nop 3
    s_cmp_lg_u32 s36, 55
    s_cbranch_scc1 Lk5_end
    s_lshl_b32 s37, s3, 11
    """)
    for j in range(8):
        a(f"v_mov_b32 v{8+j}, 0")
    for j in range(8):
        a(f"buffer_atomic_add_f32 v{8+j}, v55, s[28:31], s37 offen offset:{4*j} sc0")
    a(f"""
    s_mov_b32 s37, {LOG2E:#x}
    v_mul_f32 v32, s37, v32
    v_exp_f32 v32, -v32
    s_nop 0
    v_add_f32 v32, 1.0, v32
    v_rcp_f32 v32, v32
    s_nop 0
    """)
    round_bf16(a, 32, 32)
    for j in range(4):
        unpack_bf16(a, 64 + 2 * j, 65 + 2 * j, 24 + j)
        unpack_bf16(a, 72 + 2 * j, 73 + 2 * j, 28 + j)
    a("s_waitcnt vmcnt(0)")
    for j in range(8):
        round_bf16(a, 8 + j, 8 + j)
        a(f"v_mul_f32 v{8+j}, v{8+j}, v32")
        round_bf16(a, 8 + j, 8 + j)
        a(f"v_add_f32 v{8+j}, v{8+j}, v{64+j}")
        round_bf16(a, 8 + j, 8 + j)
        a(f"v_mul_f32 v{8+j}, v{8+j}, v{56+j}")
        round_bf16(a, 8 + j, 8 + j)
        a(f"v_add_f32 v{8+j}, v{8+j}, v{72+j}")
    for j in range(4):
        a(f"v_cvt_pk_bf16_f32 v{80+j}, v{8+2*j}, v{9+2*j}")
    a(f"buffer_store_dwordx4 v[80:83], v4, s[68:71], s59 offen{SC}")
    a.label("Lk5_end")
    a("s_endpgm")
    return kernel_desc("pm_kernel", 128, sgpr=100)
```

```python
from genlib import *
from gen_small import *

def gen_prep2(a):
    import os
    kernel_begin(a, "prep_kernel")
    a(f"""
    s_cmp_ge_u32 s2, 176
    s_cbranch_scc1 Lk0_end
    s_load_dwordx2 s[4:5], s[0:1], 80
    s_load_dwordx2 s[6:7], s[0:1], 88
    s_load_dwordx2 s[8:9], s[0:1], 112
    s_load_dwordx2 s[10:11], s[0:1], 0
    s_load_dwordx2 s[30:31], s[0:1], 104
    s_cmp_ge_u32 s2, 48
    s_cbranch_scc1 Lk0_h1
    v_and_b32 v1, 7, v0
    v_lshrrev_b32 v2, 3, v0
    v_lshlrev_b32 v3, 5, v2
    s_mov_b32 s24, 98304
    v_mul_lo_u32 v28, v2, s24
    v_lshlrev_b32 v29, 4, v1
    v_add_u32 v28, v28, v29
    s_lshl_b32 s25, s2, 7
    s_waitcnt lgkmcnt(0)
    """)
    srd(a, 12, 4, 1024)
    srd(a, 16, 6, 512 * 3072 * 2)
    srd(a, 20, 8, 3072 * 4, WS_MOD)
    srd(a, 32, 30, 256)
    a("buffer_load_dwordx4 v[4:7], v3, s[12:15], 0 offen")
    a("buffer_load_dwordx4 v[8:11], v3, s[12:15], 0 offen offset:16")
    for kk in range(16):
        a(f"buffer_load_dwordx4 v[{32+4*kk}:{35+4*kk}], v28, s[16:19], s25 offen")
        if kk < 15:
            a("s_add_u32 s25, s25, 6144")
    a("s_waitcnt vmcnt(16)")
    for j in range(8):
        unpack_bf16(a, 12 + 2 * j, 13 + 2 * j, 4 + j)
    a(f"s_mov_b32 s26, {LOG2E:#x}")
    for k in range(16):
        v = 12 + k
        a(f"v_mul_f32 v30, s26, v{v}")
        a(f"v_exp_f32 v30, -v30")
        a("s_nop 0")
        a(f"v_add_f32 v30, 1.0, v30")
        a(f"v_rcp_f32 v30, v30")
        a("s_nop 0")
        a(f"v_mul_f32 v{v}, v{v}, v30")
        round_bf16(a, v, v)
    for j in range(8):
        a(f"v_mov_b32 v{96+j}, 0")
    for kk in range(16):
        a(f"s_waitcnt vmcnt({15-kk})")
        for j in range(4):
            unpack_bf16(a, 30, 31, 32 + 4 * kk + j)
            a(f"v_fmac_f32 v{96+2*j}, v{12+kk}, v30")
            a(f"v_fmac_f32 v{97+2*j}, v{12+kk}, v31")
    a("""
    v_lshlrev_b32 v3, 8, v2
    v_lshlrev_b32 v29, 5, v1
    v_add_u32 v3, v3, v29
    ds_write_b128 v3, v[96:99]
    ds_write_b128 v3, v[100:103] offset:16
    s_waitcnt lgkmcnt(0)
    s_barrier
    v_cmp_gt_u32 vcc, 64, v0
    s_and_saveexec_b64 s[28:29], vcc
    s_cbranch_execz Lk0_end
    v_lshlrev_b32 v3, 2, v0
    """)
    for ks in range(32):
        a(f"ds_read_b32 v{32+ks}, v3 offset:{ks*256}")
    a("s_waitcnt lgkmcnt(0)")
    for ks in range(1, 32):
        a(f"v_add_f32 v32, v32, v{32+ks}")
    round_bf16(a, 32, 32)
    a("""
    s_lshl_b32 s25, s2, 8
    buffer_store_dword v32, v3, s[20:23], s25 offen sc0 sc1
    s_cmp_ge_u32 s2, 16
    s_cbranch_scc1 Lk0_end
    s_waitcnt vmcnt(0)
    v_mov_b32 v4, 1
    v_mov_b32 v5, 64
    s_mov_b64 exec, 1
    buffer_atomic_add v4, v5, s[32:35], 0 offen sc0 sc1
    s_waitcnt vmcnt(0)
    v_readfirstlane_b32 s24, v4
    s_nop 3
    s_cmp_lg_u32 s24, 15
    s_cbranch_scc1 Lk0_end
    v_mov_b32 v4, 16
    v_mov_b32 v5, 128
    buffer_store_dword v4, v5, s[32:35], 0 offen sc0 sc1
    s_branch Lk0_end
    """)
    a.label("Lk0_h1")
    a("""
    v_and_b32 v1, 63, v0
    v_lshrrev_b32 v2, 6, v0
    s_sub_u32 s24, s2, 48
    s_lshl_b32 s24, s24, 2
    v_add_u32 v2, s24, v2
    v_lshlrev_b32 v2, 2, v2
    v_lshlrev_b32 v3, 10, v2
    v_lshlrev_b32 v4, 4, v1
    v_add_u32 v3, v3, v4
    v_lshlrev_b32 v5, 5, v1
    s_waitcnt lgkmcnt(0)
    """)
    srd(a, 12, 10, 2048 * 512 * 2)
    srd(a, 16, 8, 3072 * 4, WS_MOD)
    srd(a, 20, 8, 2048 * 512 * 2, WS_H1F)
    srd(a, 32, 30, 256)
    for r in range(4):
        a(f"buffer_load_dwordx4 v[{8+4*r}:{11+4*r}], v3, s[12:15], 0 offen offset:{r*1024}")
    a("""
    v_lshrrev_b32 v6, 5, v2
    v_lshlrev_b32 v6, 15, v6
    v_lshrrev_b32 v7, 1, v1
    v_lshlrev_b32 v7, 10, v7
    v_add_u32 v6, v6, v7
    v_and_b32 v7, 31, v2
    v_lshlrev_b32 v7, 4, v7
    v_add_u32 v6, v6, v7
    v_and_b32 v7, 1, v1
    v_lshlrev_b32 v7, 9, v7
    v_add_u32 v6, v6, v7
    s_waitcnt vmcnt(0)
    """)
    for r in range(4):
        x0 = 32
        for j in range(4):
            unpack_bf16(a, x0 + 2 * j, x0 + 1 + 2 * j, 8 + 4 * r + j)
        t0, t1, t2, t3 = 24, 25, 26, 27
        a(f"v_add_f32 v{t0}, v{x0}, v{x0+1}")
        for j in range(2, 8):
            a(f"v_add_f32 v{t0}, v{t0}, v{x0+j}")
        wave_allreduce(a, t0, t1, t2)
        a(f"v_mul_f32 v{t0}, 0x3b000000, v{t0}")
        a(f"v_sub_f32 v{t1}, v{x0}, v{t0}")
        a(f"v_mul_f32 v{t3}, v{t1}, v{t1}")
        for j in range(1, 8):
            a(f"v_sub_f32 v{t1}, v{x0+j}, v{t0}")
            a(f"v_fmac_f32 v{t3}, v{t1}, v{t1}")
        wave_allreduce(a, t3, t1, t2)
        a(f"v_mul_f32 v{t3}, 0x3b000000, v{t3}")
        round_bf16(a, t0, t0)
        round_bf16(a, t3, t3)
        a(f"v_add_f32 v{t3}, 0x3727c5ac, v{t3}")
        round_bf16(a, t3, t3)
        a(f"v_sqrt_f32 v{t3}, v{t3}")
        a("s_nop 0")
        round_bf16(a, t3, t3)
        a(f"v_rcp_f32 v{t3}, v{t3}")
        a("s_nop 0")
        for j in range(8):
            o = 64 + 8 * r + j
            a(f"v_sub_f32 v{o}, v{x0+j}, v{t0}")
            round_bf16(a, o, o)
            a(f"v_mul_f32 v{o}, v{o}, v{t3}")
            round_bf16(a, o, o)
    a("""
    v_mov_b32 v28, 128
    v_lshrrev_b32 v29, 6, v0
    s_nop 0
    v_readfirstlane_b32 s24, v29
    s_nop 3
    s_cmp_lg_u32 s24, 0
    s_cbranch_scc1 Lk0_go
    """)
    a.label("Lk0_poll")
    a("""
    buffer_load_dword v29, v28, s[32:35], 0 offen sc0 sc1
    s_waitcnt vmcnt(0)
    v_readfirstlane_b32 s24, v29
    s_nop 3
    s_cmp_ge_u32 s24, 16
    s_cbranch_scc1 Lk0_go
    s_sleep 2
    s_branch Lk0_poll
    """)
    a.label("Lk0_go")
    a("""
    s_barrier
    buffer_load_dwordx4 v[40:43], v5, s[16:19], 0 offen sc1
    buffer_load_dwordx4 v[44:47], v5, s[16:19], 0 offen offset:16 sc1
    buffer_load_dwordx4 v[48:51], v5, s[16:19], 0 offen offset:2048 sc1
    buffer_load_dwordx4 v[52:55], v5, s[16:19], 0 offen offset:2064 sc1
    s_waitcnt vmcnt(0)
    """)
    for j in range(8):
        a(f"v_add_f32 v{48+j}, 1.0, v{48+j}")
        round_bf16(a, 48 + j, 48 + j)
    for r in range(4):
        for j in range(8):
            o = 64 + 8 * r + j
            a(f"v_mul_f32 v{o}, v{o}, v{48+j}")
            round_bf16(a, o, o)
            a(f"v_add_f32 v{o}, v{o}, v{40+j}")
        for j in range(4):
            a(f"v_cvt_pk_bf16_f32 v{8+4*r+j}, v{64+8*r+2*j}, v{65+8*r+2*j}")
        a(f"buffer_store_dwordx4 v[{8+4*r}:{11+4*r}], v6, s[20:23], 0 offen offset:{16*r}" + (" sc1" if 'hsc1' in os.environ.get('XF','') else ""))
    a.label("Lk0_end")
    a("s_endpgm")
    return kernel_desc("prep_kernel", 104, sgpr=64)
```
